```python
import torch

def _softmax(x, axis=-1):
    return torch.softmax(x, dim=axis)
def _gelu(x):
    return torch.nn.functional.gelu(x, approximate="tanh")
def _silu(x):
    return torch.nn.functional.silu(x)
def _sigmoid(x):
    return torch.sigmoid(x)
def _layernorm(x, axis=-1, eps=1e-5):
    m = x.mean(dim=axis, keepdim=True)
    v = x.var(dim=axis, keepdim=True, unbiased=False)
    return (x - m) / torch.sqrt(v + eps)
def _scatter_add(tgt, idx, src, axis=0):
    return tgt.clone().index_add_(axis, idx, src)
def _segment_sum(src, seg, n):
    out = torch.zeros((n,) + src.shape[1:], dtype=src.dtype)
    return out.index_add_(0, seg, src)
def _pad(x, pw):
    flat = tuple(v for pair in reversed(pw) for v in pair)
    return torch.nn.functional.pad(x, flat)

kernel_name = 'parallel_sum__linear_attn_block__dense_activation_squared_relu__prompt'

def setup_inputs():

    _w = (lambda a: (lambda t: t.to(torch.bfloat16) if t.is_floating_point() else t)(torch.as_tensor(a)))
    def _A_setup():
        B, S, D = 1, 2048, 576
        return {
            "x": _w((lambda *s: torch.randn(*s, dtype=torch.bfloat16) * 0.05)(B, S, D)),
            "wqkv": _w((lambda *s: torch.randn(*s, dtype=torch.bfloat16) * 0.4)(D, 3 * D)),
            "wo": _w((lambda *s: torch.randn(*s, dtype=torch.bfloat16) * 0.4)(D, D)),
        }
    _A_in = _A_setup()

    def _B_setup():
        B, S, D, F = 1, 2048, 576, 4608
        return {
            "x": _w((lambda *s: torch.randn(*s, dtype=torch.bfloat16) * 0.05)(B, S, D)),
            "w1": _w((lambda *s: torch.randn(*s, dtype=torch.bfloat16) * 0.05)(D, F)),
            "b1": _w((lambda *s: torch.randn(*s, dtype=torch.bfloat16) * 0.2)(F)),
            "w2": _w((lambda *s: torch.randn(*s, dtype=torch.bfloat16) * 0.05)(F, D)),
            "b2": _w((lambda *s: torch.randn(*s, dtype=torch.bfloat16) * 1.6)(D)),
        }
    _B_in = _B_setup()

    return {
        "A_x": _A_in["x"],
        "A_wqkv": _A_in["wqkv"],
        "A_wo": _A_in["wo"],
        "B_x": _B_in["x"],
        "B_w1": _B_in["w1"],
        "B_b1": _B_in["b1"],
        "B_w2": _B_in["w2"],
        "B_b2": _B_in["b2"],
    }

def reference(A_x, A_wqkv, A_wo, B_x, B_w1, B_b1, B_w2, B_b2):
    def _A_ref(x, wqkv, wo):
        B, S, D = x.shape
        H = 32; Dh = D // H
        qkv = (lambda x, *d: x.permute(*d))((x @ wqkv).reshape(B, S, 3, H, Dh), 2, 0, 3, 1, 4)
        q, k, v = qkv[0], qkv[1], qkv[2]
        phi = lambda t: torch.where(t > 0, t + 1, torch.exp(t)) + 1e-6
        pq, pk = phi(q), phi(k)
        kv = torch.einsum("bhsd,bhse->bhde", pk, v)
        z = torch.einsum("bhsd->bhd", pk)
        num = torch.einsum("bhqd,bhde->bhqe", pq, kv)
        den = torch.einsum("bhqd,bhd->bhq", pq, z)[..., None] + 1e-6
        o = num / den
        return (lambda x, *d: x.permute(*d))(o, 0, 2, 1, 3).reshape(B, S, D) @ wo

    def _B_ref(x, w1, b1, w2, b2):
        h = torch.einsum("bsd,df->bsf", x, w1) + b1
        zero = torch.zeros_like(h)
        r = torch.where(h > zero, h, zero)
        h = r * r
        out = torch.einsum("bsf,fd->bsd", h, w2) + b2
        return out

    x = A_x
    xn = _layernorm(x, axis=-1)
    return x + _A_ref(xn, A_wqkv, A_wo) + _B_ref(xn, B_w1, B_b1, B_w2, B_b2)
```

```python
from emit import Ins

def attention(G):
    E = G.E
    V, A, srd, xn = G.V, G.A, G.srd, G.xn
    globals().update({k: getattr(G, k) for k in dir(G) if k.isupper() or k.startswith('S_') or k.startswith('V_')})
    D = min(G.OPT['D'], 3)
    L = V_LANE
    G.mk_srd(S_WA, S_PTR + 2, 576 * 3456)
    G.mk_srd(S_WB, S_PTR + 4, 576 * 1152)
    G.mk_srd(S_DBG, S_PTR + 18, 256)
    G.a_pattern(3456)
    G.w_read_addrs(S_G)
    E('s_lshl_b32 s%d, s%d, 8' % (S_C1, S_G))
    E('s_lshl_b32 s%d, s%d, 16' % (S_KV, S_G))
    E('s_add_u32 s%d, s%d, 0x%x' % (S_KV, S_KV, WS_KV))
    z = ACC
    for i in range(4):
        E('v_mov_b32 v%d, 0' % (z + i))
    E('s_lshl_b32 s%d, s%d, 10' % (S_T0, S_ROW0))
    E('s_add_u32 s%d, s%d, s%d' % (S_T0, S_T0, S_KV))
    E('buffer_store_dwordx4 %s, v%d, %s, s%d offen sc1' % (V(z, 4), V_L16, srd(S_WS), S_T0), tag='zero')
    if G.OPT['prefetch']:
        E('s_and_b32 s%d, s%d, 7' % (S_T2, S_RT))
        for mi, cb in enumerate((1152, 2304, 0)):
            E('s_add_u32 s%d, s%d, %d' % (S_T1, S_C1, cb))
            for op in G.l2_prefetch(S_WA, S_T1, 3, 3456, 576, S_T2, 8, lambda i: 'a%d' % (240 + mi), 'pf'):
                E(op)
        for op in G.l2_prefetch(S_WB, S_C1, 3, 1152, 576, S_T2, 8, lambda i: 'a243', 'pf'):
            E(op)
    E('s_mul_i32 s%d, s%d, %d' % (S_ABASE, S_WAVE, 16 * 3456))
    E('s_add_u32 s%d, s%d, s%d' % (S_ABASE, S_ABASE, S_C1))
    E('s_mul_i32 s%d, s%d, %d' % (S_BBASE, S_WAVE, 16 * 1152))
    E('s_add_u32 s%d, s%d, s%d' % (S_BBASE, S_BBASE, S_C1))
    E('s_lshl_b32 s%d, s%d, 2' % (S_C2, S_G))
    E('v_mov_b32 v%d, s%d' % (V_FLG, S_C2))

    def stage_dma(t):
        mi, st = divmod(t, 9)
        if mi < 3:
            cb = (1152, 2304, 0)[mi]
            return G.dma_ops(t, t % 6, S_WA, V_DA, S_ABASE, [64 * st * 3456 + cb + 128 * p for p in range(3)])
        return G.dma_ops(t, t % 6, S_WB, V_DB, S_BBASE, [64 * st * 1152 + 128 * p for p in range(3)])

    def one_lane_add(off):
        skip = G.newlabel('cnt')
        E('s_cmp_lg_u32 s%d, 0' % S_WAVE)
        E('s_cbranch_scc1 %s' % skip)
        E('v_mov_b32 v%d, 1' % V_T)
        E('s_mov_b64 exec, 1')
        E('buffer_atomic_add v%d, off, %s, s%d offset:%d sc1' % (V_T, srd(S_DBG), S_C2, off))
        E.vm.pop()
        E('s_mov_b64 exec, -1')
        E.label(skip)

    def after_reads():
        for t in range(D):
            for op in stage_dma(t):
                E(op)
    G.layernorm(after_reads)
    E.wait_tag('zero')
    E('s_barrier')
    one_lane_add(0)

    def acc(i, sb):
        return ACC + (i * 2 + sb) * 4
    groups = []
    for t in range(36):
        mi, st = divmod(t, 9)
        for i in range(9):
            fr = [[G.lds_rd(2 * kl + j, t % 6, i >> 2, i & 3) for j in range(2)] for kl in range(2)]
            def mf(w0, w1, mi=mi, st=st, i=i):
                o = []
                for sb in range(2):
                    a = V(acc(i, sb), 4)
                    for kl, w in enumerate((w0, w1)):
                        x = V(xn(2 * st + kl, sb), 4)
                        c = a if (st or kl) else '0'
                        if mi < 2:
                            o.append('v_mfma_f32_16x16x32_bf16 %s, %s, %s, %s' % (a, x, w, c))
                        else:
                            o.append('v_mfma_f32_16x16x32_bf16 %s, %s, %s, %s' % (a, w, x, c))
                return o
            groups.append(G.Group(t, fr, mf))

    T = 248
    PK = 32
    def phi4(a):
        for r in range(4):
            E('v_mul_f32 v%d, 0x3fb8aa3b, v%d' % (T + r, a + r))
        for r in range(4):
            E('v_exp_f32 v%d, v%d clamp' % (T + r, T + r))
        for r in range(4):
            E('v_max_f32 v%d, 0x358637bd, v%d' % (a + r, a + r))
        for r in range(4):
            E('v_add_f32 v%d, v%d, v%d' % (a + r, a + r, T + r))

    def k_epi():
        G.stamp('k done')
        for i in range(9):
            for sb in range(2):
                a = acc(i, sb)
                phi4(a)
                E('v_cvt_pk_bf16_f32 v%d, v%d, v%d' % (T + 4, a, a + 1))
                E('v_cvt_pk_bf16_f32 v%d, v%d, v%d' % (T + 5, a + 2, a + 3))
                E('v_accvgpr_write_b32 a%d, v%d' % (PK + i * 4 + sb * 2, T + 4))
                E('v_accvgpr_write_b32 a%d, v%d' % (PK + i * 4 + sb * 2 + 1, T + 5))
        G.stamp('k epi done')

    XOFF = 3 * SLOT
    def v_epi():
        G.stamp('v done')
        wa = V_T + 1
        E('v_add_u32 v%d, s%d, v%d' % (wa, S_LDSW, V_L16))
        for i in range(9):
            a, b = acc(i, 0), acc(i, 1)
            E('v_cvt_pk_bf16_f32 v%d, v%d, v%d' % (a, a, a + 1))
            E('v_cvt_pk_bf16_f32 v%d, v%d, v%d' % (a + 1, a + 2, a + 3))
            E('v_cvt_pk_bf16_f32 v%d, v%d, v%d' % (a + 2, b, b + 1))
            E('v_cvt_pk_bf16_f32 v%d, v%d, v%d' % (a + 3, b + 2, b + 3))
        E('s_barrier')
        for i in range(9):
            E('ds_write_b128 v%d, %s offset:%d' % (wa, A(PK + 4 * i, 4), XOFF + i * 1024))
            E('ds_write_b128 v%d, %s offset:%d' % (wa, V(acc(i, 0), 4), XOFF + (9 + i) * 1024))
        G.poll_check(V_FL2, V_FLG, 0, srdn=S_DBG, mode='count', target=16)
        ones = T
        for i in range(4):
            E('v_mov_b32 v%d, 0x3f803f80' % (ones + i))
        R = [acc(i, 1) for i in range(9)] + [acc(0, 0), acc(1, 0)]
        E('v_mfma_f32_16x16x32_bf16 %s, %s, %s, 0' % (V(R[8], 4), A(PK + 32, 4), V(acc(7, 0), 4)))
        ra, rb = V_T + 2, V_T + 3
        E('s_lshl_b32 s%d, s%d, 11' % (S_T0, S_WAVE))
        E('v_add_u32 v%d, s%d, v%d' % (ra, S_T0, V_L16))
        E('s_max_u32 s%d, s%d, 1024' % (S_T1, S_T0))
        E('s_sub_u32 s%d, s%d, 1024' % (S_T1, S_T1))
        E('v_add_u32 v%d, s%d, v%d' % (rb, S_T1, V_L16))
        E('v_add_u32 v%d, %d, v%d' % (V_T + 4, 2 * REG, ra))
        E('v_add_u32 v%d, %d, v%d' % (V_T + 5, 2 * REG, rb))
        E.wait(lg=0)
        E('v_mfma_f32_16x16x32_bf16 %s, %s, %s, 0' % (V(R[9], 4), A(PK + 32, 4), V(acc(8, 0), 4)))
        E('v_mfma_f32_16x16x32_bf16 %s, %s, %s, 0' % (V(R[10], 4), A(PK + 32, 4), V(ones, 4)))
        E('s_barrier')
        F = 72
        for u in range(4):
            a_, b_ = (ra, rb) if u < 2 else (V_T + 4, V_T + 5)
            base = (u & 1) * REG + XOFF
            f = F + u * 24
            offs = [(a_, base), (a_, base + 1024), (b_, base + 9 * 1024), (a_, base + 9 * 1024), (a_, base + 10 * 1024), (a_, base + 11 * 1024)]
            for q, (ad, off) in enumerate(offs):
                if off > 65535:
                    E('v_add_u32 v%d, %d, v%d' % (V_T + 6, 8192, ad))
                    ad, off = V_T + 6, off - 8192
                E('ds_read_b128 %s, v%d offset:%d' % (A(f + 4 * q, 4), ad, off))
        for u in range(4):
            f = F + u * 24
            pairs = [(0, 2), (0, 3), (0, 4), (1, 3), (1, 4), (1, 5), (0, None), (1, None)]
            for b, (p, e) in enumerate(pairs):
                E('v_mfma_f32_16x16x32_bf16 %s, %s, %s, %s' % (V(R[b], 4), A(f + 4 * p, 4), A(f + 4 * e, 4) if e is not None else V(ones, 4), V(R[b], 4) if u else '0'))
        E('s_barrier')
        l4 = V_T + 1
        E('v_lshlrev_b32 v%d, 2, v%d' % (l4, L))
        E('s_lshl_b32 s%d, s%d, 13' % (S_T0, S_WAVE))
        E('s_add_u32 s%d, s%d, s%d' % (S_T0, S_T0, S_KV))
        E('s_add_u32 s%d, s%d, 4096' % (S_T1, S_T0))
        E('s_add_u32 s%d, s%d, %d' % (S_T2, S_KV, 32 * 1024))
        for b in (8, 9, 10, 0, 1, 2, 3, 4, 5, 6, 7):
            sb_, off = ((S_T0, b * 1024) if b < 4 else (S_T1, (b - 4) * 1024)) if b < 8 else (S_T2, (b - 8) * 1024)
            for r in range(4):
                E('buffer_atomic_add_f32 v%d, v%d, %s, s%d offen offset:%d' % (R[b] + r, l4, srd(S_WS), sb_, off + r * 256), tag='kvat')
        G.stamp('kv atomics issued')

    def kv_signal():
        E.wait_tag('kvat')

    PQ = 32
    def q_epi():
        G.stamp('q done')
        E('v_add_u32 v%d, 128, v%d' % (V_FLG, V_FLG))
        E('buffer_load_dword v%d, v%d, %s, 0 offen sc1' % (V_FL2, V_FLG, srd(S_DBG)))
        PQV = XN
        for i in range(9):
            for sb in range(2):
                a = acc(i, sb)
                phi4(a)
                d = PQV + ((i >> 1) * 2 + sb) * 4 + (i & 1) * 2
                E('v_cvt_pk_bf16_f32 v%d, v%d, v%d' % (d, a, a + 1))
                E('v_cvt_pk_bf16_f32 v%d, v%d, v%d' % (d + 1, a + 2, a + 3))
        for sb in range(2):
            d = PQV + (8 + sb) * 4 + 2
            E('v_mov_b32 v%d, 0' % d)
            E('v_mov_b32 v%d, 0' % (d + 1))
        G.stamp('q epi done')
        G.poll_check(V_FL2, V_FLG, 0, srdn=S_DBG, mode='count', target=16, issued=True)
        G.stamp('kv ready')
        KS = 72
        l4 = V_T + 1
        E('v_lshlrev_b32 v%d, 2, v%d' % (l4, L))
        E('s_lshl_b32 s%d, s%d, 13' % (S_T0, S_WAVE))
        E('s_add_u32 s%d, s%d, s%d' % (S_T0, S_T0, S_KV))
        E('s_add_u32 s%d, s%d, 4096' % (S_T1, S_T0))
        E('s_add_u32 s%d, s%d, %d' % (S_T2, S_KV, 32 * 1024))
        for b in range(11):
            sb_, off = ((S_T0, b * 1024) if b < 4 else (S_T1, (b - 4) * 1024)) if b < 8 else (S_T2, (b - 8) * 1024)
            for r in range(4):
                E('buffer_load_dword v%d, v%d, %s, s%d offen offset:%d sc1' % (KS + b * 4 + r, l4, srd(S_WS), sb_, off + r * 256))
        HD, HE = 116, 124
        t = V_T + 2
        E('s_lshl_b32 s%d, s%d, 5' % (S_T3, S_WAVE))
        E('v_lshrrev_b32 v%d, 4, v%d' % (t, L))
        E('v_lshlrev_b32 v%d, 2, v%d' % (t, t))
        E('v_add_u32 v%d, s%d, v%d' % (t, S_T3, t))
        for h in range(2):
            for r in range(4):
                d = HD + h * 4 + r
                E('v_add_u32 v%d, %d, v%d' % (d, 16 * h + r, t))
                E('v_mul_u32_u24 v%d, 3641, v%d' % (d, d))
                E('v_lshrrev_b32 v%d, 16, v%d' % (d, d))
        E('v_and_b32 v%d, 15, v%d' % (t + 1, L))
        E('v_add_u32 v%d, s%d, v%d' % (t, S_T3, t + 1))
        for e in range(4):
            d = HE + e
            E('v_add_u32 v%d, %d, v%d' % (d, 16 * e + 2, t))
            E('v_mul_u32_u24 v%d, 3641, v%d' % (d, d))
            E('v_lshrrev_b32 v%d, 16, v%d' % (d, d))
            E('v_add_u32 v%d, -1, v%d' % (d, d))
        FB = 128
        blk = {(0, 0): 0, (0, 1): 1, (0, 2): 2, (1, 1): 3, (1, 2): 4, (1, 3): 5}
        wa = V_T + 4
        E('s_lshl_b32 s%d, s%d, 13' % (S_T3, S_WAVE))
        for e in range(4):
            for h in range(2):
                kvd, zd = FB + 8 * e + 2 * h, FB + 8 * e + 4 + 2 * h
                if (h, e) not in blk:
                    for d in (kvd, kvd + 1, zd, zd + 1):
                        E('v_mov_b32 v%d, 0' % d)
                    continue
                src, zs = KS + blk[(h, e)] * 4, KS + (6 + h) * 4
                for r in range(4):
                    E('v_cmp_eq_u32 vcc, v%d, v%d' % (HD + h * 4 + r, HE + e))
                    E('v_cndmask_b32 v%d, 0, v%d, vcc' % (T + r, src + r))
                    E('v_cndmask_b32 v%d, 0, v%d, vcc' % (T + 4 + r, zs + r))
                E('v_cvt_pk_bf16_f32 v%d, v%d, v%d' % (kvd, T, T + 1))
                E('v_cvt_pk_bf16_f32 v%d, v%d, v%d' % (kvd + 1, T + 2, T + 3))
                E('v_cvt_pk_bf16_f32 v%d, v%d, v%d' % (zd, T + 4, T + 5))
                E('v_cvt_pk_bf16_f32 v%d, v%d, v%d' % (zd + 1, T + 6, T + 7))
        K4 = 160
        E('v_cmp_le_u32 vcc, 14, v%d' % (t + 1))
        for r in range(4):
            E('v_cndmask_b32 v%d, 0, v%d, vcc' % (T + r, KS + 8 * 4 + r))
            E('v_cndmask_b32 v%d, 0, v%d, vcc' % (T + 4 + r, KS + 10 * 4 + r))
        E('v_cvt_pk_bf16_f32 v%d, v%d, v%d' % (K4, T, T + 1))
        E('v_cvt_pk_bf16_f32 v%d, v%d, v%d' % (K4 + 1, T + 2, T + 3))
        E('v_cvt_pk_bf16_f32 v%d, v%d, v%d' % (K4 + 4, T + 4, T + 5))
        E('v_cvt_pk_bf16_f32 v%d, v%d, v%d' % (K4 + 5, T + 6, T + 7))
        E('v_cvt_pk_bf16_f32 v%d, v%d, v%d' % (K4 + 8, KS + 36, KS + 37))
        E('v_cvt_pk_bf16_f32 v%d, v%d, v%d' % (K4 + 9, KS + 38, KS + 39))
        E('v_cvt_pk_bf16_f32 v%d, v%d, v%d' % (K4 + 12, KS + 40, KS + 41))
        E('v_cvt_pk_bf16_f32 v%d, v%d, v%d' % (K4 + 13, KS + 42, KS + 43))
        for d in (2, 3, 6, 7, 10, 11, 14, 15):
            E('v_mov_b32 v%d, 0' % (K4 + d))
        E('v_add_u32 v%d, s%d, v%d' % (wa, S_LDSW, V_L16))
        E('s_barrier')
        for q in range(8):
            E('ds_write_b128 v%d, %s offset:%d' % (wa, V(FB + 4 * q, 4), q * 1024))
        E('v_add_u32 v%d, %d, v%d' % (wa + 1, 2 * REG, V_L16))
        E.wait(lg=0)
        E('s_barrier')
        AF = 72
        for w in range(4):
            for q in range(8):
                if w == 0 and q < 2:
                    continue
                E('ds_read_b128 %s, v%d offset:%d' % (A(AF + (w * 8 + q) * 4, 4), V_L16 if w < 2 else wa + 1, (w & 1) * REG + q * 1024))
        E('s_mul_i32 s%d, s%d, %d' % (S_OB, S_ROW0, 36 * 1024))
        E('s_add_u32 s%d, s%d, 0x%x' % (S_OB, S_OB, WS_O))
        E('s_mul_i32 s%d, s%d, %d' % (S_T0, S_G, 9 * 1024))
        E('s_add_u32 s%d, s%d, s%d' % (S_T0, S_T0, S_OB))
        l8 = V_T + 1
        E('v_lshlrev_b32 v%d, 3, v%d' % (l8, L))
        def afr(eb, i, z):
            if i == 4:
                return V(K4 + (eb - 7) * 8 + 4 * z, 4)
            return A(AF + (i * 8 + (eb - 2 * i + 1) * 2 + z) * 4, 4)
        DEN = 72
        for eb in range(9):
            ks = [i for i in ((eb - 1) >> 1, (eb + 1) >> 1) if 0 <= i <= 4]
            for sb in range(2):
                for z, dst in ((0, acc(eb, sb)), (1, DEN + (eb * 2 + sb) * 4)):
                    for n, i in enumerate(ks):
                        E('v_mfma_f32_16x16x32_bf16 %s, %s, %s, %s' % (V(dst, 4), afr(eb, i, z), V(PQV + (i * 2 + sb) * 4, 4), V(dst, 4) if n else '0'))
        E('s_barrier')
        for eb in range(9):
            if eb % 4 == 0:
                E('s_add_u32 s%d, s%d, %d' % (S_T1, S_T0, eb * 1024))
            for sb in range(2):
                a, d = acc(eb, sb), DEN + (eb * 2 + sb) * 4
                for r in range(4):
                    E('v_add_f32 v%d, 0x358637bd, v%d' % (d + r, d + r))
                for r in range(4):
                    E('v_rcp_f32 v%d, v%d' % (d + r, d + r))
                for r in range(4):
                    E('v_mul_f32 v%d, v%d, v%d' % (a + r, a + r, d + r))
                E('v_cvt_pk_bf16_f32 v%d, v%d, v%d' % (a, a, a + 1))
                E('v_cvt_pk_bf16_f32 v%d, v%d, v%d' % (a + 1, a + 2, a + 3))
                E('buffer_store_dwordx2 %s, v%d, %s, s%d offen offset:%d sc1' % (V(a, 2), l8, srd(S_WS), S_T1, (eb % 4) * 1024 + sb * 512), tag='o')
        E('s_lshl_b32 s%d, s%d, 9' % (S_T0, S_ROW0))
        E('s_add_u32 s%d, s%d, %d' % (S_T0, S_T0, FL_O * 128))
        E('v_min_u32 v%d, 3, v%d' % (V_FLG, L))
        E('v_lshlrev_b32 v%d, 7, v%d' % (V_FLG, V_FLG))
        E('v_add_u32 v%d, s%d, v%d' % (V_FLG, S_T0, V_FLG))
        E('s_lshl_b32 s%d, s%d, 7' % (S_T1, S_G))
        E('s_add_u32 s%d, s%d, s%d' % (S_T0, S_T0, S_T1))
        E.wait_tag('o')
        G.set_flag(S_T0, 1, V_T)
        G.stamp('o published')
        G.poll_check(V_FL2, V_FLG, 1)
        G.stamp('o ready')
        for b in range(36):
            if b % 4 == 0:
                E('s_add_u32 s%d, s%d, %d' % (S_T1, S_OB, b * 1024))
            for sb in range(2):
                E('buffer_load_dwordx2 %s, v%d, %s, s%d offen offset:%d sc1' % (V(xn(b >> 1, sb) + (b & 1) * 2, 2), l8, srd(S_WS), S_T1, (b % 4) * 1024 + sb * 512))

    side = {t: (stage_dma(t + D) if t + D < 36 else []) for t in range(36)}
    side[21] = [kv_signal] + side[21]
    side[22] = [lambda: one_lane_add(128)] + side[22]
    inter = {81: k_epi, 162: v_epi, 243: q_epi}
    G.run_groups(groups, side, inter)
    G.stamp('proj done')
    E('s_mul_i32 s%d, s%d, 36' % (S_T0, S_ROW0))
    E('s_mul_i32 s%d, s%d, 9' % (S_T1, S_G))
    E('s_add_u32 s%d, s%d, s%d' % (S_T0, S_T0, S_T1))
    E('s_mul_i32 s%d, s%d, %d' % (S_PB, S_T0, 10240))
    E('s_add_u32 s%d, s%d, 0x%x' % (S_PB, S_PB, WS_P + 4096))
    for i in range(9):
        for sb in range(2):
            E('s_add_u32 s%d, s%d, %d' % (S_SO, S_PB, i * 10240 + sb * 5120))
            E('buffer_store_dwordx4 %s, v%d, %s, s%d offen sc1' % (V(acc(i, sb), 4), V_L16, srd(S_WS), S_SO))
    E('s_lshl_b32 s%d, s%d, 2' % (S_T0, S_ROW0))
    E('s_add_u32 s%d, s%d, s%d' % (S_T0, S_T0, S_G))
    E('s_lshl_b32 s%d, s%d, 7' % (S_T0, S_T0))
    E('s_add_u32 s%d, s%d, %d' % (S_T0, S_T0, FL_A * 128))
    E.wait(vm=0)
    G.set_flag(S_T0, 1, V_T)
    G.stamp('end')
    E('s_endpgm')
```

```python
import re
import copy

_REG = re.compile(r'(?<![\w.])([vas])(?:\[(\d+):(\d+)\]|(\d+))(?![\w])')
TRANS = ('v_exp_f32', 'v_log_f32', 'v_rcp_f32', 'v_rsq_f32', 'v_sqrt_f32', 'v_sin_f32', 'v_cos_f32')


def regs_of(tok):
    tok = tok.strip()
    out = set()
    for m in _REG.finditer(tok):
        k = m.group(1)
        if m.group(4) is not None:
            out.add((k, int(m.group(4))))
        else:
            for i in range(int(m.group(2)), int(m.group(3)) + 1):
                out.add((k, i))
    if re.search(r'\bvcc\b', tok):
        out.add(('s', 106)); out.add(('s', 107))
    if re.search(r'\bvcc_lo\b', tok):
        out.add(('s', 106))
    if re.search(r'\bvcc_hi\b', tok):
        out.add(('s', 107))
    if re.search(r'\bm0\b', tok):
        out.add(('s', 124))
    if re.search(r'\bexec\b', tok):
        out.add(('s', 126)); out.add(('s', 127))
    return out


def split_ops(s):
    ops, depth, cur = [], 0, ''
    for ch in s:
        if ch in '[(':
            depth += 1
        if ch in '])':
            depth -= 1
        if ch == ',' and depth == 0:
            ops.append(cur.strip()); cur = ''
        else:
            cur += ch
    if cur.strip():
        ops.append(cur.strip())
    return ops


class Ins:
    __slots__ = ('text', 'mn', 'kind', 'rd', 'wr', 'A', 'B', 'C', 'tag', 'data', 'wide')

    def __init__(self, text, tag=None):
        self.text = text
        self.tag = tag
        parts = text.split(None, 1)
        mn = parts[0]
        self.mn = mn
        ops = split_ops(parts[1]) if len(parts) > 1 else []
        R = [regs_of(o) for o in ops]
        U = lambda l: set().union(*l) if l else set()
        self.A = self.B = self.C = set()
        self.data = set()
        self.wide = False
        if mn.startswith('v_mfma'):
            self.kind = 'sgemm' if mn.endswith('_f32') and 'x4_f32' in mn else 'mfma'
            self.wr = R[0]; self.A, self.B, self.C = R[1], R[2], R[3]
            self.rd = R[1] | R[2] | R[3]
        elif mn.startswith('v_'):
            base = mn.replace('_e32', '').replace('_e64', '').replace('_sdwa', '')
            self.kind = 'trans' if base in TRANS else ('dot' if base.startswith('v_dot') else 'valu')
            self.wr = set(R[0]); self.rd = U(R[1:])
            if base.startswith('v_permlane'):
                self.wr = R[0] | R[1]; self.rd = R[0] | R[1]
            if base in ('v_fmac_f32', 'v_dot2c_f32_bf16'):
                self.rd |= R[0]
                self.C = R[0]
            if base == 'v_dot2_f32_bf16':
                self.C = R[3]
            if '_co_' in base:
                self.wr = R[0] | R[1]; self.rd = U(R[2:])
        elif mn.startswith('ds_read'):
            self.kind = 'ds_rd'; self.wr = R[0]; self.rd = U(R[1:])
        elif mn.startswith('ds_write'):
            self.kind = 'ds_wr'; self.wr = set(); self.rd = U(R)
        elif mn.startswith('buffer_load') or mn.startswith('global_load'):
            if re.search(r'\blds\b', text):
                self.kind = 'dma'; self.wr = set(); self.rd = U(R) | {('s', 124)}
            else:
                self.kind = 'vm_ld'; self.wr = R[0]; self.rd = U(R[1:])
        elif mn.startswith('buffer_store') or mn.startswith('buffer_atomic'):
            self.kind = 'vm_st'; self.wr = set(); self.rd = U(R)
            self.data = R[0]; self.wide = mn.endswith('x4') or mn.endswith('x3')
            if mn.startswith('buffer_atomic') and re.search(r'\bsc0\b', text):
                self.kind = 'vm_ld'; self.wr = R[0]
        elif mn.startswith('s_load') or mn in ('s_memtime', 's_memrealtime'):
            self.kind = 'smem'; self.wr = R[0]; self.rd = U(R[1:])
        elif mn in ('s_waitcnt', 's_barrier', 's_nop', 's_endpgm', 's_sleep', 's_setprio') or mn.startswith('s_cbranch') or mn == 's_branch':
            self.kind = 'ctl'; self.wr = set(); self.rd = set()
        elif mn.startswith('s_cmp') or mn.startswith('s_bitcmp'):
            self.kind = 'salu'; self.wr = set(); self.rd = U(R)
        elif mn.startswith('s_'):
            self.kind = 'salu'; self.wr = set(R[0]); self.rd = U(R[1:])
            if 'saveexec' in mn:
                self.wr |= {('s', 126), ('s', 127)}
        else:
            raise ValueError('unknown instruction ' + text)


VALUK = ('valu', 'trans', 'dot')
MEMK = ('ds_rd', 'ds_wr', 'vm_ld', 'vm_st', 'dma')
VMK = ('vm_ld', 'vm_st', 'dma')


def need(p, c):
    n = 0
    pv = {r for r in p.wr if r[0] != 's'}
    ps = {r for r in p.wr if r[0] == 's'}
    if p.kind in VALUK:
        if c.kind in ('mfma', 'sgemm') and pv & c.rd:
            n = max(n, 2)
        if c.kind in VMK and ps & c.rd:
            n = max(n, 5)
        if c.kind in VALUK and ps & c.rd:
            n = max(n, 4 if 'lane' in c.mn else 2)
        if c.mn.startswith(('v_readfirstlane', 'v_readlane')) and pv & c.rd:
            n = max(n, 1)
        if c.mn.startswith('v_permlane') and pv & c.rd:
            n = max(n, 2)
        if c.kind == 'salu' and ps & c.rd:
            n = max(n, 1)
        if p.kind == 'trans' and c.kind in ('valu', 'dot') and pv & c.rd:
            n = max(n, 1)
        if p.kind == 'dot' and (pv & (c.rd | c.wr)):
            if c.mn == p.mn and not (pv & (c.rd - c.C)) and pv & c.C:
                pass
            else:
                n = max(n, 3)
    if p.kind in ('mfma', 'sgemm'):
        far = 8 if p.kind == 'mfma' else 10
        if c.kind in VALUK and pv & (c.rd | c.wr):
            n = max(n, far)
        if c.kind in MEMK and pv & (c.rd | c.wr):
            n = max(n, far)
        if c.kind in ('mfma', 'sgemm'):
            if pv & (c.A | c.B):
                n = max(n, far)
            if pv & c.C and not (pv == c.C and p.mn == c.mn):
                n = max(n, far)
            if pv & c.wr and not (pv == c.C and p.mn == c.mn):
                n = max(n, far)
        if c.kind in VALUK and (p.C & c.wr):
            n = max(n, 3)
    if p.kind == 'salu' and ('s', 124) in p.wr and c.kind == 'dma':
        n = max(n, 1)
    if p.kind == 'vm_st' and p.wide and p.data & c.wr:
        n = max(n, 2)
    return n


class Emitter:
    def __init__(self):
        self.lines = []
        self.hist = []
        self.pos = 0
        self.lg = []
        self.vm = []
        self.smem = False
        self.nnop = 0
        self.nwait = 0
        self.count = 0

    def snapshot(self):
        return (list(self.hist), self.pos, list(self.lg), list(self.vm), self.smem)

    def restore(self, s):
        self.hist, self.pos, self.lg, self.vm, self.smem = list(s[0]), s[1], list(s[2]), list(s[3]), s[4]

    def raw(self, text):
        self.lines.append(text)

    def label(self, name):
        self.lines.append(name + ':')

    def comment(self, t):
        self.lines.append('    ; ' + t)

    def _put(self, ins, states=1):
        self.lines.append('    ' + ins.text)
        self.hist.append((ins, self.pos))
        self.pos += states
        self.count += 1
        if len(self.hist) > 24:
            self.hist.pop(0)

    def wait(self, vm=None, lg=None):
        parts = []
        if vm is not None and len(self.vm) > vm:
            v = min(vm, 63)
            parts.append('vmcnt(%d)' % v)
            self.vm = self.vm[len(self.vm) - v:] if v else []
        if lg is not None and self.smem:
            lg = 0
        if lg is not None and len(self.lg) > lg:
            l = min(lg, 15)
            parts.append('lgkmcnt(%d)' % l)
            self.lg = self.lg[len(self.lg) - l:] if l else []
            if l == 0:
                self.smem = False
        if parts:
            self.nwait += 1
            self._put(Ins('s_waitcnt ' + ' '.join(parts)))

    def wait_tag(self, tag):
        idx = [i for i, o in enumerate(self.vm) if o.tag == tag]
        if idx:
            self.wait(vm=len(self.vm) - 1 - idx[-1])

    def pending_tag(self, tag):
        return any(o.tag == tag for o in self.vm)

    def __call__(self, text, tag=None):
        ins = text if isinstance(text, Ins) else Ins(text, tag)
        touch = ins.rd | ins.wr
        vmn = lgn = None
        for i, o in enumerate(self.vm):
            if o.wr & touch:
                vmn = len(self.vm) - 1 - i
        for i, o in enumerate(self.lg):
            if o.wr & touch:
                lgn = len(self.lg) - 1 - i
        if lgn is not None and self.smem:
            lgn = 0
        if vmn is not None or lgn is not None:
            self.wait(vm=vmn, lg=lgn)
        n = 0
        for p, pp in self.hist:
            d = self.pos - pp - 1
            r = need(p, ins)
            if r > d:
                n = max(n, r - d)
        if n:
            self.nnop += 1
            self._put(Ins('s_nop %d' % (n - 1)), n)
        self._put(ins)
        if ins.kind in ('ds_rd', 'ds_wr'):
            self.lg.append(ins)
        elif ins.kind in VMK:
            self.vm.append(ins)
        elif ins.kind == 'smem':
            self.smem = True
            self.lg.append(ins)
        return ins

    def fence(self):
        self._put(Ins('s_nop 9'), 10)

    def text(self):
        return '\n'.join(self.lines) + '\n'
```

```python
import sys
from emit import Emitter, Ins

NAME = 'parallel_sum__linear_attn_block__dense_activation_squared_relu__prompt'
OPT = dict(D=4, stamps=0, prefetch=1, spin=20000)
for a in sys.argv[2:]:
    k, v = a.split('=')
    OPT[k] = int(v)

REG = 37440
SLOT = 6144
XU = 1040
EXTRA = 4 * REG
LDS_BYTES = 163840
WS_FLAG = 0
WS_E = 0x80000
WS_KV = 0x100000
WS_O = 0x200000
WS_H = 0x800000
WS_P = 0x2000000
WS_STAMP = 0x6000000
WS_DBG = 0x7000000
FL_H = 0
FL_O = 1024
FL_P = 1280
FL_A = 2048

S_WG = 2
S_X, S_WA, S_WB, S_WS, S_OUT, S_B1, S_B2, S_DBG = 8, 12, 16, 20, 24, 28, 32, 36
S_PTR = 40
S_WAVE, S_G, S_RT, S_M, S_E = 62, 63, 64, 65, 66
S_LDSW = 67
S_T0, S_T1, S_T2, S_T3 = 68, 69, 70, 71
S_SO = 72
S_ABASE = 73
S_BBASE = 74
S_H0 = 75
S_HOWN = 78
S_PB = 79
S_CNT = 80
S_ROW0 = 81
S_SO2 = 82
S_MSK = 84
S_ST = 86
S_C1, S_C2 = 88, 89
S_KV = 90
S_OB = 91
S_STB = 92

def srd(n):
    return 's[%d:%d]' % (n, n + 3)
def V(n, c=1):
    return 'v%d' % n if c == 1 else 'v[%d:%d]' % (n, n + c - 1)
def A(n, c=1):
    return 'a%d' % n if c == 1 else 'a[%d:%d]' % (n, n + c - 1)

V_LANE = 1
V_WR = 2
V_DA, V_DB = 14, 16
V_L16 = 18
V_BIAS = 19
V_FLG = 20
V_FL2 = 21
V_T = 22
XN = 32
ACC = 176
HT = 240
def xn(ks, sb):
    return XN + (ks * 2 + sb) * 4

E = Emitter()
cold = []
uid = [0]
def newlabel(p):
    uid[0] += 1
    return 'L_%s_%d' % (p, uid[0])

def mk_srd(dst, ptr, nbytes):
    E('s_mov_b32 s%d, s%d' % (dst, ptr))
    E('s_and_b32 s%d, s%d, 0xffff' % (dst + 1, ptr + 1))
    E('s_mov_b32 s%d, 0x%x' % (dst + 2, nbytes))
    E('s_mov_b32 s%d, 0x20000' % (dst + 3))

stamp_n = [0]
def stamp(name=''):
    if not OPT['stamps']:
        return
    i = stamp_n[0]
    stamp_n[0] += 1
    E.comment('stamp %d %s' % (i, name))
    E('s_memrealtime s[%d:%d]' % (S_ST, S_ST + 1))
    E.wait(lg=0)
    E('v_mov_b32 v%d, s%d' % (V_T + 9, S_ST))
    E('buffer_store_dword v%d, off, %s, s%d offset:%d' % (V_T + 9, srd(S_WS), S_STB, 4 * i))

def poll_check(vtmp, voff, k, srdn=S_WS, base=WS_FLAG, mode='epoch', target=None, issued=False):
    ld = 'buffer_load_dword v%d, v%d, %s, 0 offen sc1' % (vtmp, voff, srd(srdn))
    def cmp_lines():
        if mode == 'epoch':
            return ['s_add_u32 s%d, s%d, %d' % (S_T3, S_E, k),
                    'v_subrev_u32 v%d, s%d, v%d' % (vtmp, S_T3, vtmp),
                    'v_cmp_gt_u32 vcc, 8, v%d' % vtmp]
        return ['v_cmp_le_u32 vcc, %d, v%d' % (target, vtmp)]
    if not issued:
        E(ld)
    for l in cmp_lines():
        E(l)
    slow, back = newlabel('slow'), newlabel('back')
    E('s_cmp_eq_u64 vcc, exec')
    E('s_cbranch_scc0 %s' % slow)
    E.label(back)
    loop = newlabel('spin')
    c = [slow + ':',
         '    s_mov_b32 s%d, %d' % (S_CNT, OPT['spin']),
         loop + ':',
         '    s_sleep 1',
         '    ' + ld,
         '    s_waitcnt vmcnt(0)']
    c += ['    ' + l for l in cmp_lines()]
    c += ['    s_nop 1',
          '    s_cmp_eq_u64 vcc, exec',
          '    s_cbranch_scc1 %s' % back,
          '    s_sub_u32 s%d, s%d, 1' % (S_CNT, S_CNT),
          '    s_cmp_lg_u32 s%d, 0' % S_CNT,
          '    s_cbranch_scc1 %s' % loop,
          '    s_branch %s' % back]
    cold.extend(c)

def set_flag(sidx_reg_byteoff, k, vtmp):
    E('s_add_u32 s%d, s%d, %d' % (S_T3, S_E, k))
    E('v_mov_b32 v%d, s%d' % (vtmp, S_T3))
    E('buffer_store_dword v%d, off, %s, s%d sc1' % (vtmp, srd(S_WS), sidx_reg_byteoff))

def lds_rd(region, slot, p, nb, extra=0):
    off = region * REG + slot * SLOT + p * 2048 + extra
    win = off >> 16
    return V_WR + win * 4 + nb, off - (win << 16)

def dma_ops(stage, slot, srdn, vd, sbase, offs):
    ops = []
    for p in range(3):
        ops.append(Ins('s_add_u32 m0, s%d, %d' % (S_LDSW, slot * SLOT + p * 2048)))
        ops.append(Ins('s_add_u32 s%d, s%d, %d' % (S_SO, sbase, offs[p])))
        ops.append(Ins('buffer_load_dwordx4 v%d, %s, s%d offen lds' % (vd, srd(srdn), S_SO), tag=('dma', stage)))
        ops.append(Ins('buffer_load_dwordx4 v%d, %s, s%d offen offset:1024 lds' % (vd + 1, srd(srdn), S_SO), tag=('dma', stage)))
    return ops

class Group:
    def __init__(self, stage, frags, mf):
        self.stage, self.frags, self.mf = stage, frags, mf

AHEAD = 3
def run_groups(groups, side, interlude=None):
    interlude = interlude or {}
    n = len(groups)
    def wreg(gi, f):
        return ((gi % 4) * 2 + f) * 4
    def reads(gi):
        out = []
        for f in range(2):
            for j in range(2):
                ad, imm = groups[gi].frags[f][j]
                out.append('ds_read_b64_tr_b16 %s, v%d offset:%d' % (A(wreg(gi, f) + 2 * j, 2), ad, imm))
        return out
    def barrier_for(gi):
        if gi < n and (gi == 0 or groups[gi].stage != groups[gi - 1].stage):
            E.wait_tag(('dma', groups[gi].stage))
            E('s_barrier')
    for gi in range(min(AHEAD, n)):
        barrier_for(gi)
        for r in reads(gi):
            E(r)
    cnt = {}
    for g in groups:
        cnt[g.stage] = cnt.get(g.stage, 0) + 4
    done = {}
    emitted = {}
    for gi, g in enumerate(groups):
        if gi in interlude:
            interlude[gi]()
        st = g.stage
        sl = side.get(st, [])
        rd = []
        mf = g.mf(A(wreg(gi, 0), 4), A(wreg(gi, 1), 4))
        for i in range(4):
            E(mf[i])
            if i == 0 and gi + AHEAD < n:
                barrier_for(gi + AHEAD)
                rd = reads(gi + AHEAD)
            if i < len(rd):
                E(rd[i])
            done[st] = done.get(st, 0) + 1
            want = (len(sl) * done[st] + cnt[st] - 1) // cnt[st]
            while emitted.get(st, 0) < want:
                op = sl[emitted.get(st, 0)]
                emitted[st] = emitted.get(st, 0) + 1
                if callable(op):
                    op()
                else:
                    E(op)

def merge(*lists):
    items = []
    for li, l in enumerate(lists):
        for i, x in enumerate(l):
            items.append(((i + 0.5) / len(l), li, i, x))
    items.sort(key=lambda t: t[:3])
    return [t[3] for t in items]

def prologue():
    E('s_cmp_ge_u32 s2, 256')
    E('s_cbranch_scc1 L_exit')
    E('s_load_dwordx16 s[40:55], s[0:1], 0')
    E('s_load_dwordx4 s[56:59], s[0:1], 64')
    E('s_load_dwordx2 s[60:61], s[0:1], 80')
    E('v_and_b32 v%d, 63, v0' % V_LANE)
    E('v_lshrrev_b32 v%d, 6, v0' % V_T)
    E('v_readfirstlane_b32 s%d, v%d' % (S_WAVE, V_T))
    E('s_and_b32 s%d, s2, 3' % S_G)
    E('s_lshr_b32 s%d, s2, 5' % S_RT)
    E('s_and_b32 s%d, s2, 4' % S_T0)
    E('s_lshl_b32 s%d, s%d, 1' % (S_T0, S_T0))
    E('s_add_u32 s%d, s%d, s%d' % (S_RT, S_RT, S_T0))
    E('s_lshr_b32 s%d, s2, 3' % S_M)
    E('s_and_b32 s%d, s%d, 3' % (S_M, S_M))
    E('s_mul_i32 s%d, s%d, %d' % (S_LDSW, S_WAVE, REG))
    E('s_lshl_b32 s%d, s%d, 2' % (S_ROW0, S_RT))
    E('s_add_u32 s%d, s%d, s%d' % (S_ROW0, S_ROW0, S_WAVE))
    L = V_LANE
    t0, t1, t2, t3 = V_T, V_T + 1, V_T + 2, V_T + 3
    E('v_lshlrev_b32 v%d, 4, v%d' % (V_L16, L))
    E('v_lshrrev_b32 v%d, 3, v%d' % (t0, L))
    E('v_lshrrev_b32 v%d, 3, v%d' % (t1, L))
    E('v_and_b32 v%d, 6, v%d' % (t1, t1))
    E('v_and_b32 v%d, 7, v%d' % (t2, L))
    E('v_xor_b32 v%d, v%d, v%d' % (t1, t1, t2))
    E('v_lshlrev_b32 v%d, 4, v%d' % (t1, t1))
    E('v_mul_u32_u24 v%d, 1152, v%d' % (V_DB, t0))
    E('v_add_u32 v%d, v%d, v%d' % (V_DB, V_DB, t1))
    E('v_add_u32 v%d, %d, v%d' % (t3, 8 * 1152 - XU, V_DB))
    E('v_add_u32 v%d, %d, v%d' % (V_DB + 1, 8 * 1152 - 1024, V_DB))
    E.wait(lg=0)
    mk_srd(S_X, S_PTR + 0, 2048 * 1152)
    mk_srd(S_WS, S_PTR + 20, 0x10000000)
    E('s_lshl_b32 s%d, s%d, 7' % (S_T0, S_RT))
    E('s_add_u32 s%d, s%d, 0x%x' % (S_T0, S_T0, WS_E))
    E('buffer_load_dword v%d, off, %s, s%d sc1' % (V_FL2, srd(S_WS), S_T0))
    E('s_mul_i32 s%d, s%d, %d' % (S_T1, S_ROW0, 32 * 1152))
    for sb in range(2):
        for c in range(9):
            E('s_add_u32 m0, s%d, %d' % (S_LDSW, (4 * c + 2 * sb) * XU))
            E('s_add_u32 s%d, s%d, %d' % (S_SO, S_T1, sb * 16 * 1152 + 128 * c))
            E('buffer_load_dwordx4 v%d, %s, s%d offen lds' % (V_DB, srd(S_X), S_SO), tag=('x', sb))
            E('buffer_load_dwordx4 v%d, %s, s%d offen offset:%d lds' % (t3, srd(S_X), S_SO, XU), tag=('x', sb))
    if OPT['stamps']:
        E('s_lshl_b32 s%d, s2, 2' % S_STB)
        E('s_add_u32 s%d, s%d, s%d' % (S_STB, S_STB, S_WAVE))
        E('s_lshl_b32 s%d, s%d, 8' % (S_STB, S_STB))
        E('s_add_u32 s%d, s%d, 0x%x' % (S_STB, S_STB, WS_STAMP))
    stamp('start')

def w_read_addrs(sshift):
    L = V_LANE
    a, b, c, d = V_T + 4, V_T + 5, V_T + 6, V_T + 7
    E('v_lshrrev_b32 v%d, 2, v%d' % (a, L))
    E('v_lshlrev_b32 v%d, 7, v%d' % (a, a))
    E('v_and_b32 v%d, 3, v%d' % (b, L))
    E('v_lshl_add_u32 v%d, v%d, 3, v%d' % (a, b, a))
    E('v_bfe_u32 v%d, v%d, 3, 2' % (b, L))
    for nb in range(4):
        if sshift is None:
            E('v_xor_b32 v%d, %d, v%d' % (c, nb, b))
            E('v_lshl_add_u32 v%d, v%d, 5, v%d' % (V_WR + nb, c, a))
        else:
            E('s_add_u32 s%d, s%d, %d' % (S_T0, sshift, nb))
            E('s_and_b32 s%d, s%d, 3' % (S_T1, S_T0))
            E('s_lshr_b32 s%d, s%d, 2' % (S_T0, S_T0))
            E('s_lshl_b32 s%d, s%d, 11' % (S_T0, S_T0))
            E('v_xor_b32 v%d, s%d, v%d' % (c, S_T1, b))
            E('v_lshl_add_u32 v%d, v%d, 5, v%d' % (c, c, a))
            E('v_add_u32 v%d, s%d, v%d' % (V_WR + nb, S_T0, c))
    for win in (1, 2):
        for nb in range(4):
            E('v_add_u32 v%d, 0x%x, v%d' % (V_WR + win * 4 + nb, win << 16, V_WR + nb))

def a_pattern(stride):
    t0, t1 = V_T, V_T + 1
    E('v_mul_u32_u24 v%d, %d, v%d' % (V_DA, stride, t0))
    E('v_add_u32 v%d, v%d, v%d' % (V_DA, V_DA, t1))
    E('v_add_u32 v%d, %d, v%d' % (V_DA + 1, 8 * stride - 1024, V_DA))

def bf16r(dst, src):
    E('v_cvt_pk_bf16_f32 v%d, v%d, v%d' % (dst, src, src))
    E('v_lshlrev_b32 v%d, 16, v%d' % (dst, dst))

def layernorm(after_reads):
    L = V_LANE
    ad = ACC + 40
    a, b, c = ACC + 44, ACC + 45, ACC + 46
    ones = ACC + 48
    E('v_bfe_u32 v%d, v%d, 3, 1' % (a, L))
    E('v_mul_u32_u24 v%d, %d, v%d' % (a, XU, a))
    E('v_and_b32 v%d, 7, v%d' % (b, L))
    E('v_lshl_add_u32 v%d, v%d, 7, v%d' % (a, b, a))
    E('v_lshrrev_b32 v%d, 4, v%d' % (b, L))
    E('v_lshl_add_u32 v%d, v%d, 3, v%d' % (a, b, a))
    E('v_add_u32 v%d, s%d, v%d' % (a, S_LDSW, a))
    E('v_bfe_u32 v%d, v%d, 1, 2' % (b, L))
    for p in range(4):
        E('v_xor_b32 v%d, %d, v%d' % (c, p, b))
        E('v_lshl_add_u32 v%d, v%d, 5, v%d' % (ad + p, c, a))
    for i in range(4):
        E('v_mov_b32 v%d, 0x3f803f80' % (ones + i))
    E('v_mov_b32 v%d, 1.0' % c)
    def rd(sb):
        E.wait_tag(('x', sb))
        for ks in range(18):
            for j in range(2):
                p = 2 * (ks & 1) + j
                E('ds_read_b64 %s, v%d offset:%d' % (V(xn(ks, sb) + 2 * j, 2), ad + p, 4 * XU * (ks >> 1) + 2 * XU * sb))
    def stats(sb):
        S = ACC + sb * 16
        for ks in range(18):
            E('v_mfma_f32_16x16x32_bf16 %s, %s, %s, %s' % (V(S, 4), V(ones, 4), V(xn(ks, sb), 4), V(S, 4) if ks else '0'))
            for i in range(4):
                r = xn(ks, sb) + i
                q = S + 4 + (i & 1)
                E('v_dot2_f32_bf16 v%d, v%d, v%d, %s' % (q, r, r, 'v%d' % q if (ks or i > 1) else '0'))
        E('v_add_f32 v%d, v%d, v%d' % (S + 4, S + 4, S + 5))
        E('v_mfma_f32_16x16x4_f32 %s, v%d, v%d, 0' % (V(S + 8, 4), c, S + 4))
        mean, var = S + 6, S + 7
        E('v_mul_f32 v%d, 0x%x, v%d' % (mean, 0x3ae38e39, S))
        E('v_mul_f32 v%d, 0x%x, v%d' % (var, 0x3ae38e39, S + 8))
        E('v_fma_f32 v%d, -v%d, v%d, v%d' % (var, mean, mean, var))
        E('v_max_f32 v%d, 0, v%d' % (var, var))
        bf16r(mean, mean)
        bf16r(var, var)
        E('v_add_f32 v%d, 0x3727c5ac, v%d' % (var, var))
        bf16r(var, var)
        E('v_sqrt_f32 v%d, v%d' % (var, var))
        bf16r(var, var)
        E('v_rcp_f32 v%d, v%d' % (S + 12, var))
        E('v_mul_f32 v%d, -v%d, v%d' % (S + 14, mean, S + 12))
    def norm(sb):
        S = ACC + sb * 16
        T = ACC + 52
        regs = [xn(ks, sb) + i for ks in range(18) for i in range(4)]
        for n0 in range(0, 72, 4):
            for u in range(4):
                r = regs[n0 + u]
                E('v_lshlrev_b32 v%d, 16, v%d' % (T + 2 * u, r))
                E('v_and_b32 v%d, 0xffff0000, v%d' % (T + 2 * u + 1, r))
            for u in range(4):
                E('v_pk_fma_f32 %s, %s, %s, %s op_sel_hi:[1,0,0]' % (V(T + 2 * u, 2), V(T + 2 * u, 2), V(S + 12, 2), V(S + 14, 2)))
            for u in range(4):
                E('v_cvt_pk_bf16_f32 v%d, v%d, v%d' % (regs[n0 + u], T + 2 * u, T + 2 * u + 1))
    rd(0)
    E('v_readfirstlane_b32 s%d, v%d' % (S_E, V_FL2))
    stamp('x0 landed')
    stats(0)
    rd(1)
    E.wait(lg=0)
    after_reads()
    norm(0)
    stats(1)
    norm(1)
    stamp('ln done')

def l2_prefetch(srdn, sbase, nlines_row, stride, nrows, share_s, nshare, vdst, tag):
    rows_per = nrows // (nshare * 4)
    total = rows_per * nlines_row
    ops = []
    a, b = V_T + 4, V_T + 5
    ops.append('s_lshl_b32 s%d, s%d, 2' % (S_SO2, share_s))
    ops.append('s_add_u32 s%d, s%d, s%d' % (S_SO2, S_SO2, S_WAVE))
    ops.append('s_mul_i32 s%d, s%d, %d' % (S_SO2, S_SO2, rows_per * stride))
    ops.append('s_add_u32 s%d, s%d, s%d' % (S_SO2, S_SO2, sbase))
    magic = (65536 + nlines_row - 1) // nlines_row
    for i in range((total + 63) // 64):
        ops.append('v_add_u32 v%d, %d, v%d' % (a, 64 * i, V_LANE))
        ops.append('v_min_u32 v%d, %d, v%d' % (a, total - 1, a))
        ops.append('v_mul_u32_u24 v%d, %d, v%d' % (b, magic, a))
        ops.append('v_lshrrev_b32 v%d, 16, v%d' % (b, b))
        ops.append('v_mul_u32_u24 v%d, %d, v%d' % (b, stride - 128 * nlines_row, b))
        ops.append('v_lshl_add_u32 v%d, v%d, 7, v%d' % (a, a, b))
        ops.append(Ins('buffer_load_dword %s, v%d, %s, s%d offen' % (vdst(i), a, srd(srdn), S_SO2), tag=tag))
    return ops

def mlp():
    D = OPT['D']
    mk_srd(S_WA, S_PTR + 8, 576 * 9216)
    mk_srd(S_WB, S_PTR + 12, 4608 * 1152)
    mk_srd(S_B1, S_PTR + 10, 4608 * 2)
    mk_srd(S_B2, S_PTR + 14, 576 * 2)
    mk_srd(S_OUT, S_PTR + 16, 2048 * 1152)
    a_pattern(9216)
    w_read_addrs(None)
    E('s_mul_i32 s%d, s%d, 3' % (S_T0, S_G))
    E('s_add_u32 s%d, s%d, s%d' % (S_T0, S_T0, S_M))
    E('s_mul_i32 s%d, s%d, 768' % (S_C1, S_T0))
    E('s_mul_i32 s%d, s%d, %d' % (S_C2, S_G, 1152 * 1152))
    E('s_mul_i32 s%d, s%d, 384' % (S_T1, S_M))
    E('s_add_u32 s%d, s%d, s%d' % (S_C2, S_C2, S_T1))
    E('s_and_b32 s%d, s%d, 7' % (S_T2, S_RT))
    if OPT['prefetch']:
        for op in l2_prefetch(S_WA, S_C1, 6, 9216, 576, S_T2, 8, lambda i: 'a%d' % (240 + i), 'pf'):
            E(op)
    b0, b1 = V_T + 4, V_T + 5
    E('s_mul_i32 s%d, s%d, 192' % (S_T1, S_WAVE))
    E('s_add_u32 s%d, s%d, s%d' % (S_T3, S_T1, S_C1))
    E('v_min_u32 v%d, 47, v%d' % (V_T + 6, V_LANE))
    E('v_lshlrev_b32 v%d, 2, v%d' % (V_T + 7, V_T + 6))
    E('buffer_load_dword v%d, v%d, %s, s%d offen' % (V_T + 8, V_T + 7, srd(S_B1), S_T3))
    E('v_lshlrev_b32 v%d, 3, v%d' % (V_T + 7, V_T + 6))
    E('s_lshl_b32 s%d, s%d, 1' % (S_T1, S_T1))
    E('s_add_u32 s%d, s%d, %d' % (S_T1, S_T1, EXTRA))
    E('v_add_u32 v%d, s%d, v%d' % (V_T + 7, S_T1, V_T + 7))
    E('v_lshrrev_b32 v%d, 4, v%d' % (V_BIAS, V_LANE))
    E('v_lshlrev_b32 v%d, 4, v%d' % (V_BIAS, V_BIAS))
    E('v_add_u32 v%d, %d, v%d' % (V_BIAS, EXTRA, V_BIAS))
    E('s_mul_i32 s%d, s%d, %d' % (S_ABASE, S_WAVE, 48 * 9216))
    E('s_add_u32 s%d, s%d, s%d' % (S_ABASE, S_ABASE, S_C1))
    E('s_mul_i32 s%d, s%d, %d' % (S_BBASE, S_WAVE, 16 * 1152))
    E('s_add_u32 s%d, s%d, s%d' % (S_BBASE, S_BBASE, S_C2))
    E('s_lshl_b32 s%d, s%d, 2' % (S_T0, S_RT))
    E('s_add_u32 s%d, s%d, s%d' % (S_T0, S_T0, S_G))
    E('s_mul_i32 s%d, s%d, %d' % (S_T1, S_T0, 3 * 4 * 6 * 4096))
    E('s_mul_i32 s%d, s%d, %d' % (S_T3, S_WAVE, 6 * 4096))
    E('s_add_u32 s%d, s%d, s%d' % (S_T1, S_T1, S_T3))
    for mm in range(3):
        E('s_add_u32 s%d, s%d, 0x%x' % (S_H0 + mm, S_T1, WS_H + mm * 4 * 6 * 4096))
    E('s_mul_i32 s%d, s%d, %d' % (S_T3, S_M, 4 * 6 * 4096))
    E('s_add_u32 s%d, s%d, s%d' % (S_HOWN, S_H0, S_T3))
    E('s_lshl_b32 s%d, s%d, 2' % (S_T0, S_T0))
    E('s_add_u32 s%d, s%d, s%d' % (S_T0, S_T0, S_WAVE))
    E('s_lshl_b32 s%d, s%d, 9' % (S_T0, S_T0))
    E('v_min_u32 v%d, 2, v%d' % (V_FLG, V_LANE))
    E('v_lshlrev_b32 v%d, 7, v%d' % (V_FLG, V_FLG))
    E('v_add_u32 v%d, s%d, v%d' % (V_FLG, S_T0, V_FLG))
    E('s_lshl_b32 s%d, s%d, 7' % (S_T1, S_M))
    E('s_add_u32 s%d, s%d, s%d' % (S_KV, S_T0, S_T1))

    def stage_dma(t):
        if t < 18:
            ch, st = divmod(t, 3)
            return dma_ops(t, t % 6, S_WA, V_DA, S_ABASE, [(192 * st + 16 * p) * 9216 + 128 * ch for p in range(3)])
        ch, mm = divmod(t - 18, 3)
        return dma_ops(t, t % 6, S_WB, V_DB, S_BBASE, [(384 * mm + 64 * ch) * 1152 + 128 * p for p in range(3)])

    def after_reads():
        for t in range(D):
            for op in stage_dma(t):
                E(op)
        E('v_lshlrev_b32 v%d, 16, v%d' % (b0, V_T + 8))
        E('v_and_b32 v%d, 0xffff0000, v%d' % (b1, V_T + 8))
        E('ds_write_b64 v%d, %s' % (V_T + 7, V(b0, 2)))
    layernorm(after_reads)
    E.wait(lg=0)
    E('s_barrier')

    def acc1(ch, nb, sb):
        return ACC + (ch & 1) * 32 + (nb * 2 + sb) * 4
    def bias_reads(ch):
        return ['ds_read_b128 %s, v%d offset:%d' % (V(acc1(ch, nb, sb), 4), V_BIAS, (ch * 64 + nb * 16) * 4)
                for nb in range(4) for sb in range(2)]
    def epi(ch):
        ops = []
        ops.append('s_add_u32 s%d, s%d, %d' % (S_SO2, S_HOWN, ch * 4096))
        for kl in range(2):
            for sb in range(2):
                T = HT + (kl * 2 + sb) * 4
                for h in range(2):
                    a = acc1(ch, 2 * kl + h, sb)
                    for i in range(4):
                        ops.append('v_mul_f32 v%d, v%d, |v%d|' % (a + i, a + i, a + i))
                    ops.append('v_cvt_pk_bf16_f32 v%d, v%d, v%d' % (T + 2 * h, a, a + 1))
                    ops.append('v_cvt_pk_bf16_f32 v%d, v%d, v%d' % (T + 2 * h + 1, a + 2, a + 3))
                for i in range(4):
                    ops.append('v_pk_max_i16 v%d, v%d, 0' % (T + i, T + i))
                ops.append(Ins('buffer_store_dwordx4 %s, v%d, %s, s%d offen offset:%d sc1' % (V(T, 4), V_L16, srd(S_WS), S_SO2, (kl * 2 + sb) * 1024), tag=('h', ch)))
        return ops
    def hstage(u):
        return 32 + (u % 14) * 16
    def hloads(u):
        ch, mm = divmod(u, 3)
        ops = ['s_add_u32 s%d, s%d, %d' % (S_T2, S_H0 + mm, ch * 4096)]
        for f in range(4):
            ops.append('buffer_load_dwordx4 %s, v%d, %s, s%d offen offset:%d sc1' % (A(hstage(u) + 4 * f, 4), V_L16, srd(S_WS), S_T2, f * 1024))
        return ops
    def acc2(nb, sb):
        return XN + (nb * 2 + sb) * 4

    groups = []
    for t in range(18):
        ch, st = divmod(t, 3)
        for nb in range(4):
            for kp in range(3):
                fr = []
                for f in range(2):
                    ksl = 2 * kp + f
                    fr.append([lds_rd((2 * ksl + j) // 3, t % 6, (2 * ksl + j) % 3, nb) for j in range(2)])
                def mf(w0, w1, ch=ch, nb=nb, ks=6 * st + 2 * kp):
                    o = []
                    for sb in range(2):
                        a = V(acc1(ch, nb, sb), 4)
                        o.append('v_mfma_f32_16x16x32_bf16 %s, %s, %s, %s' % (a, w0, V(xn(ks, sb), 4), a))
                        o.append('v_mfma_f32_16x16x32_bf16 %s, %s, %s, %s' % (a, w1, V(xn(ks + 1, sb), 4), a))
                    return o
                groups.append(Group(t, fr, mf))
    for u in range(18):
        t = 18 + u
        for nbl in range(12):
            fr = [[lds_rd(2 * kl + j, t % 6, nbl >> 2, nbl & 3) for j in range(2)] for kl in range(2)]
            def mf(w0, w1, u=u, nbl=nbl):
                o = []
                for sb in range(2):
                    a = V(acc2(nbl, sb), 4)
                    o.append('v_mfma_f32_16x16x32_bf16 %s, %s, %s, %s' % (a, w0, A(hstage(u) + sb * 4, 4), a if u else '0'))
                    o.append('v_mfma_f32_16x16x32_bf16 %s, %s, %s, %s' % (a, w1, A(hstage(u) + 8 + sb * 4, 4), a))
                return o
            groups.append(Group(t, fr, mf))

    side = {t: [] for t in range(36)}
    extra = {t: [] for t in range(36)}
    for ch in range(6):
        e = epi(ch)
        h = len(e) // 2 + 1
        extra[3 * ch + 3] += e[:h]
        extra[3 * ch + 4] += e[h:]
        if ch + 2 < 6:
            extra[3 * ch + 5] += bias_reads(ch + 2)
    def publish(ch, k):
        def f():
            E.wait_tag(('h', ch))
            set_flag(S_KV, k, V_T)
        return f
    def poll_issue():
        E('buffer_load_dword v%d, v%d, %s, 0 offen sc1' % (V_FL2, V_FLG, srd(S_WS)))
    def poll_chk(k):
        return lambda: poll_check(V_FL2, V_FLG, k, issued=True)
    for k, ch in enumerate((1, 3, 5), 1):
        tp = 3 * ch + 7
        extra[tp].append(publish(ch, k))
        extra[tp + 2].append(poll_issue)
        extra[tp + 3].append(poll_chk(k))
        for i, u in enumerate(range(6 * (k - 1), 6 * k)):
            extra[tp + 4 + i // 2] += hloads(u)
    if OPT['prefetch']:
        E('s_and_b32 s%d, s%d, 7' % (S_T0, S_RT))
        pf = l2_prefetch(S_WB, S_C2, 3, 1152, 1152, S_T0, 8, lambda i: 'a%d' % (244 + i), 'pf')
        extra[0] += pf
    for t in range(36):
        d = stage_dma(t + D) if t + D < 36 else []
        side[t] = merge(d, extra[t]) if d and extra[t] else (d or extra[t])
    for r in bias_reads(0) + bias_reads(1):
        E(r)
    inter = {}
    if OPT['stamps']:
        inter[18 * 12] = lambda: stamp('gemm1 done')
    run_groups(groups, side, inter)
    stamp('gemm2 done')

    E('s_mul_i32 s%d, s%d, 36' % (S_T0, S_ROW0))
    E('s_mul_i32 s%d, s%d, 12' % (S_T1, S_M))
    E('s_add_u32 s%d, s%d, s%d' % (S_T0, S_T0, S_T1))
    E('s_mul_i32 s%d, s%d, %d' % (S_PB, S_T0, 10240))
    E('s_add_u32 s%d, s%d, 0x%x' % (S_PB, S_PB, WS_P))
    E('s_mul_i32 s%d, s%d, 3' % (S_T0, S_ROW0))
    E('s_add_u32 s%d, s%d, s%d' % (S_T0, S_T0, S_M))
    E('s_lshl_b32 s%d, s%d, 9' % (S_T0, S_T0))
    E('s_add_u32 s%d, s%d, %d' % (S_T0, S_T0, FL_P * 128))
    E('s_lshl_b32 s%d, s%d, 7' % (S_T1, S_G))
    E('s_add_u32 s%d, s%d, s%d' % (S_KV, S_T0, S_T1))
    E('v_lshlrev_b32 v%d, 7, v%d' % (V_FLG, V_LANE))
    E('v_add_u32 v%d, s%d, v%d' % (V_FLG, S_T0, V_FLG))
    E('s_lshl_b32 s%d, s%d, 2' % (S_T1, S_M))
    E('s_add_u32 s%d, s%d, s%d' % (S_T1, S_T1, S_G))
    E('s_mul_i32 s%d, s%d, 43' % (S_T2, S_T1))
    E('s_lshr_b32 s%d, s%d, 7' % (S_T2, S_T2))
    E('s_lshl_b32 s%d, s%d, 2' % (S_T0, S_ROW0))
    E('s_add_u32 s%d, s%d, s%d' % (S_T0, S_T0, S_T2))
    E('s_lshl_b32 s%d, s%d, 7' % (S_T0, S_T0))
    E('s_add_u32 s%d, s%d, %d' % (S_T0, S_T0, FL_A * 128))
    E('v_mov_b32 v%d, s%d' % (V_T, S_T0))
    E('v_cmp_gt_u32 vcc, 4, v%d' % V_LANE)
    E('v_cndmask_b32 v%d, v%d, v%d, vcc' % (V_FLG, V_T, V_FLG))
    xo = V_T + 1
    E('v_and_b32 v%d, 15, v%d' % (xo, V_LANE))
    E('v_mul_u32_u24 v%d, 1152, v%d' % (xo, xo))
    E('v_lshrrev_b32 v%d, 4, v%d' % (V_T + 2, V_LANE))
    E('v_lshlrev_b32 v%d, 3, v%d' % (V_T + 2, V_T + 2))
    E('v_add_u32 v%d, v%d, v%d' % (xo, xo, V_T + 2))
    E('s_mul_i32 s%d, s%d, 96' % (S_C1, S_T1))
    E('s_mul_i32 s%d, s%d, %d' % (S_C2, S_ROW0, 32 * 1152))
    E('s_add_u32 s%d, s%d, s%d' % (S_C2, S_C2, S_C1))
    E('s_add_u32 s%d, s%d, %d' % (S_OB, S_C2, 16 * 1152))
    XR = 128
    BR = 140
    PR = 148
    for i in range(3):
        for sb in range(2):
            E('buffer_load_dwordx2 %s, v%d, %s, s%d offen offset:%d' % (V(XR + (i * 2 + sb) * 2, 2), xo, srd(S_X), S_OB if sb else S_C2, 32 * i))
        E('buffer_load_dwordx2 %s, v%d, %s, s%d offen offset:%d' % (V(BR + i * 2, 2), V_T + 2, srd(S_B2), S_C1, 32 * i))
    snap_lbl = [newlabel('tail') for _ in range(4)]
    for g in range(1, 4):
        E('s_cmp_eq_u32 s%d, %d' % (S_G, g))
        E('s_cbranch_scc1 %s' % snap_lbl[g])
    snap = E.snapshot()
    sn = stamp_n[0]
    for g in range(4):
        E.restore(snap)
        stamp_n[0] = sn
        E.label(snap_lbl[g])
        for nbl in range(12):
            if nbl // 3 == g:
                continue
            E('s_add_u32 s%d, s%d, %d' % (S_SO, S_PB, nbl * 10240 + g * 1024))
            E('s_add_u32 s%d, s%d, %d' % (S_SO2, S_PB, nbl * 10240 + 5120 + g * 1024))
            E('buffer_store_dwordx4 %s, v%d, %s, s%d offen sc1' % (V(acc2(nbl, 0), 4), V_L16, srd(S_WS), S_SO))
            E('buffer_store_dwordx4 %s, v%d, %s, s%d offen sc1' % (V(acc2(nbl, 1), 4), V_L16, srd(S_WS), S_SO2))
        for i in range(3):
            for sb in range(2):
                a = acc2(3 * g + i, sb)
                for h in range(2):
                    for src in (XR + (i * 2 + sb) * 2 + h, BR + i * 2 + h):
                        E('v_lshlrev_b32 v%d, 16, v%d' % (V_T + 4, src))
                        E('v_and_b32 v%d, 0xffff0000, v%d' % (V_T + 5, src))
                        E('v_add_f32 v%d, v%d, v%d' % (a + 2 * h, a + 2 * h, V_T + 4))
                        E('v_add_f32 v%d, v%d, v%d' % (a + 2 * h + 1, a + 2 * h + 1, V_T + 5))
        E.wait(vm=0)
        set_flag(S_KV, 1, V_T)
        stamp('partials published')
        poll_check(V_FL2, V_FLG, 1)
        stamp('partials ready')
        srcs = [s for s in range(5) if s != g]
        for i in range(3):
            for sb in range(2):
                E('s_add_u32 s%d, s%d, %d' % (S_SO, S_PB, (3 * g + i) * 10240 + sb * 5120))
                E('s_add_u32 s%d, s%d, %d' % (S_SO2, S_PB, (3 * g + i) * 10240 + sb * 5120 + 4096))
                for q, s in enumerate(srcs):
                    E('buffer_load_dwordx4 %s, v%d, %s, s%d offen offset:%d sc1' % (V(PR + ((i * 2 + sb) * 4 + q) * 4, 4), V_L16, srd(S_WS), S_SO2 if s == 4 else S_SO, 0 if s == 4 else s * 1024))
        for i in range(3):
            for sb in range(2):
                a = acc2(3 * g + i, sb)
                for q in range(4):
                    p = PR + ((i * 2 + sb) * 4 + q) * 4
                    for r in range(4):
                        E('v_add_f32 v%d, v%d, v%d' % (a + r, a + r, p + r))
                E('v_cvt_pk_bf16_f32 v%d, v%d, v%d' % (a, a, a + 1))
                E('v_cvt_pk_bf16_f32 v%d, v%d, v%d' % (a + 1, a + 2, a + 3))
                E('buffer_store_dwordx2 %s, v%d, %s, s%d offen offset:%d' % (V(a, 2), xo, srd(S_OUT), S_OB if sb else S_C2, 32 * i))
        if g == 0:
            skip = newlabel('noep')
            E('s_or_b32 s%d, s%d, s%d' % (S_T0, S_M, S_WAVE))
            E('s_cmp_lg_u32 s%d, 0' % S_T0)
            E('s_cbranch_scc1 %s' % skip)
            E('s_lshl_b32 s%d, s%d, 7' % (S_T0, S_RT))
            E('s_add_u32 s%d, s%d, 0x%x' % (S_T0, S_T0, WS_E))
            set_flag(S_T0, 16, V_T)
            E.label(skip)
        stamp('end')
        E('s_endpgm')

from attn import attention

def main():
    hdr = open('cdna_kernels/%s.s.ref' % NAME).read().split('\n')
    head = [l for l in hdr if l.startswith(';') and '@launch' not in l and 'Override' not in l and 'grid=ceil' not in l]
    out = head + ['; @launch grid=(256,1,1) block=(256,1,1) lds=%d' % LDS_BYTES,
                  '.amdgcn_target "amdgcn-amd-amdhsa--gfx950"', '.text', '.globl %s_kernel' % NAME, '.p2align 8',
                  '.type %s_kernel,@function' % NAME, '%s_kernel:' % NAME]
    prologue()
    E('s_cmp_eq_u32 s%d, 3' % S_M)
    E('s_cbranch_scc1 L_attn')
    snap = E.snapshot()
    sn = stamp_n[0]
    mlp()
    E.raw('\n'.join(cold)); cold.clear()
    E.restore(snap)
    stamp_n[0] = sn
    E.label('L_attn')
    attention(sys.modules[__name__])
    E.raw('\n'.join(cold)); cold.clear()
    E.label('L_exit')
    E.raw('    s_endpgm')
    out.append(E.text())
    out += ['.section .rodata,"a"', '.p2align 6', '.amdhsa_kernel %s_kernel' % NAME,
            '  .amdhsa_next_free_vgpr 512', '  .amdhsa_next_free_sgpr 102', '  .amdhsa_accum_offset 256',
            '  .amdhsa_group_segment_fixed_size 0', '  .amdhsa_kernarg_size 88', '  .amdhsa_user_sgpr_count 2',
            '  .amdhsa_user_sgpr_kernarg_segment_ptr 1', '  .amdhsa_system_sgpr_workgroup_id_x 1',
            '  .amdhsa_float_denorm_mode_32 3',
            '.end_amdhsa_kernel', '']
    open(sys.argv[1], 'w').write('\n'.join(out))
    print('instructions %d nops %d waits %d' % (E.count, E.nnop, E.nwait))

if __name__ == '__main__':
    main()
```

```python
from emit import Ins

def attention(G):
    E = G.E
    V, A, srd, xn, MF = G.V, G.A, G.srd, G.xn, G.MF
    globals().update({k: getattr(G, k) for k in dir(G) if k.isupper() or k.startswith('S_') or k.startswith('V_')})
    D = 3
    L = V_LANE
    su = ['s_mov_b32 s%d, s%d' % (S_DBG, S_PTR + 18), 's_and_b32 s%d, s%d, 0xffff' % (S_DBG + 1, S_PTR + 19),
          's_mov_b32 s%d, 256' % (S_DBG + 2), 's_mov_b32 s%d, 0x20000' % (S_DBG + 3),
          's_lshl_b32 s%d, s%d, 2' % (S_C2, S_G),
          'v_mov_b32 v%d, s%d' % (V_FLG, S_C2),
          's_lshl_b32 s%d, s%d, 6' % (S_T0, S_G),
          's_add_u32 s%d, s%d, s%d' % (S_T0, S_T0, S_ROW0),
          's_mul_i32 s%d, s%d, 9216' % (S_PB, S_T0),
          's_add_u32 s%d, s%d, 0x%x' % (S_PB, S_PB, WS_KP),
          's_min_u32 s%d, s%d, 49' % (S_T0, S_ROW0),
          's_and_b32 s%d, s%d, 1' % (S_H0, S_T0),
          's_lshr_b32 s%d, s%d, 1' % (S_H0 + 1, S_T0),
          's_add_u32 s%d, s%d, 1' % (S_T0, S_H0 + 1),
          's_mul_i32 s%d, s%d, 43' % (S_H0 + 2, S_T0),
          's_lshr_b32 s%d, s%d, 7' % (S_H0 + 2, S_H0 + 2),
          's_mul_i32 s%d, s%d, 3' % (S_T1, S_H0 + 2),
          's_sub_u32 s%d, s%d, s%d' % (S_HOWN, S_T0, S_T1),
          's_lshr_b32 s%d, s%d, 1' % (S_T0, S_H0 + 2),
          's_mul_i32 s%d, s%d, 9216' % (S_T0, S_T0),
          's_and_b32 s%d, s%d, 1' % (S_T1, S_H0 + 2),
          's_mul_i32 s%d, s%d, 3' % (S_T2, S_T1),
          's_add_u32 s%d, s%d, s%d' % (S_T2, S_T2, S_HOWN),
          's_lshl_b32 s%d, s%d, 10' % (S_T2, S_T2),
          's_add_u32 s%d, s%d, s%d' % (S_SA, S_T0, S_T2),
          's_lshl_b32 s%d, s%d, 10' % (S_T1, S_T1),
          's_add_u32 s%d, s%d, s%d' % (S_SB, S_T0, S_T1),
          's_add_u32 s%d, s%d, %d' % (S_SB, S_SB, 6144),
          's_mul_i32 s%d, s%d, 9216' % (S_T0, S_HOWN),
          's_add_u32 s%d, s%d, 8192' % (S_T0, S_T0),
          lambda: (E('s_cmp_eq_u32 s%d, 8' % (S_H0 + 2)),
                   E('s_cselect_b32 s%d, s%d, s%d' % (S_SA, S_T0, S_SA)),
                   E('s_cselect_b32 s%d, %d, s%d' % (S_SB, 2 * 9216 + 8192, S_SB))),
          's_mul_i32 s%d, s%d, %d' % (S_T0, S_G, 64 * 9216),
          's_lshl_b32 s%d, s%d, 3' % (S_T1, S_H0),
          's_add_u32 s%d, s%d, s%d' % (S_T0, S_T0, S_T1),
          's_add_u32 s%d, s%d, 0x%x' % (S_T0, S_T0, WS_KP),
          's_add_u32 s%d, s%d, s%d' % (S_SA, S_SA, S_T0),
          's_add_u32 s%d, s%d, s%d' % (S_SB, S_SB, S_T0),
          's_mul_i32 s%d, s%d, 25600' % (S_BBASE, S_G),
          's_add_u32 s%d, s%d, 0x%x' % (S_BBASE, S_BBASE, WS_KF),
          ]

    def stage_dma(t):
        mi, st = divmod(t, 9)
        cb = (0, 1152, -1152)[mi]
        return G.dma_ops(t, t % 6, S_WA, V_DA, S_ABASE, [(64 * st * 3456 + cb + 128 * p) & 0xffffffff for p in range(3)])

    def one_lane_add(off):
        skip = G.newlabel('cnt')
        E('s_cmp_lg_u32 s%d, 0' % S_WAVE)
        E('s_cbranch_scc1 %s' % skip)
        E('v_mov_b32 v%d, 1' % V_T)
        E('s_mov_b64 exec, 1')
        E('buffer_atomic_add v%d, off, %s, s%d offset:%d sc1' % (V_T, srd(S_DBG), S_C2, off))
        E.vm.pop()
        E('s_mov_b64 exec, -1')
        E.label(skip)

    def acc(i, sb):
        return ACC + (i * 2 + sb) * 4
    groups = []
    for t in range(27):
        mi, st = divmod(t, 9)
        for i in range(9):
            fr = [[G.lds_rd(2 * kl + j, t % 6, i >> 2, i & 3) for j in range(2)] for kl in range(2)]
            def mf(w0, w1, mi=mi, st=st, i=i):
                o = []
                for sb in range(2):
                    a = V(acc(i, sb), 4)
                    for kl, w in enumerate((w0, w1)):
                        x = V(xn(2 * st + kl, sb), 4)
                        c = a if (st or kl) else '0'
                        o.append(MF % ((a, x, w, c) if mi < 2 else (a, w, x, c)))
                return o
            groups.append(G.Group(t, fr, mf))

    T = 248
    PK = 48
    def phi4(a):
        for r in range(4):
            E('v_mul_f32 v%d, 0x3fb8aa3b, v%d' % (T + r, a + r))
        for r in range(4):
            E('v_exp_f32 v%d, v%d clamp' % (T + r, T + r))
        for r in range(4):
            E('v_max_f32 v%d, 0x358637bd, v%d' % (a + r, a + r))
        for r in range(4):
            E('v_add_f32 v%d, v%d, v%d' % (a + r, a + r, T + r))

    def k_epi():
        G.stamp('k done')
        for i in range(9):
            for sb in range(2):
                a = acc(i, sb)
                phi4(a)
                E('v_cvt_pk_bf16_f32 v%d, v%d, v%d' % (T + 4, a, a + 1))
                E('v_cvt_pk_bf16_f32 v%d, v%d, v%d' % (T + 5, a + 2, a + 3))
                E('v_accvgpr_write_b32 a%d, v%d' % (PK + i * 4 + sb * 2, T + 4))
                E('v_accvgpr_write_b32 a%d, v%d' % (PK + i * 4 + sb * 2 + 1, T + 5))
        G.stamp('k epi done')

    XOFF = 3 * SLOT
    def v_epi():
        G.stamp('v done')
        wa = V_T + 1
        E('v_add_u32 v%d, s%d, v%d' % (wa, S_LDSW, V_L16))
        E('s_barrier')
        for i in range(9):
            E('ds_write_b128 v%d, %s offset:%d' % (wa, A(PK + 4 * i, 4), XOFF + i * 1024))
            a, b = acc(i, 0), acc(i, 1)
            E('v_cvt_pk_bf16_f32 v%d, v%d, v%d' % (a, a, a + 1))
            E('v_cvt_pk_bf16_f32 v%d, v%d, v%d' % (a + 1, a + 2, a + 3))
            E('v_cvt_pk_bf16_f32 v%d, v%d, v%d' % (a + 2, b, b + 1))
            E('v_cvt_pk_bf16_f32 v%d, v%d, v%d' % (a + 3, b + 2, b + 3))
            E('ds_write_b128 v%d, %s offset:%d' % (wa, V(acc(i, 0), 4), XOFF + (9 + i) * 1024))
        ones = T
        for i in range(4):
            E('v_mov_b32 v%d, 0x3f803f80' % (ones + i))
        R = [acc(i, 1) for i in range(9)]
        ra, rb, rc = V_T + 2, V_T + 3, V_T + 4
        E('s_lshl_b32 s%d, s%d, 11' % (S_T0, S_WAVE))
        E('v_add_u32 v%d, s%d, v%d' % (ra, S_T0, V_L16))
        E('s_max_u32 s%d, s%d, 1024' % (S_T1, S_T0))
        E('s_sub_u32 s%d, s%d, 1024' % (S_T1, S_T1))
        E('v_add_u32 v%d, s%d, v%d' % (rb, S_T1, V_L16))
        E('s_min_u32 s%d, s%d, 1024' % (S_T1, S_T0))
        E('v_add_u32 v%d, s%d, v%d' % (rc, S_T1, V_L16))
        E('v_mov_b32 v%d, v%d' % (wa, V_L16))
        E.wait(lg=0)
        E('s_barrier')
        F = 88
        for u in range(4):
            f = F + u * 32
            offs = [(ra, 0), (ra, 1), (rb, 9), (ra, 9), (ra, 10), (ra, 11), (wa, 8), (rc, 16)]
            for q, (ad, off) in enumerate(offs):
                E('ds_read_b128 %s, v%d offset:%d' % (A(f + 4 * q, 4), ad, XOFF + off * 1024))
            if u < 3:
                for r in (ra, rb, rc, wa):
                    E('v_add_u32 v%d, %d, v%d' % (r, REG, r))
        Z8 = acc(0, 0)
        for u in range(4):
            f = F + u * 32
            pairs = [(0, 2), (0, 3), (0, 4), (1, 3), (1, 4), (1, 5), (0, None), (1, None), (6, 7)]
            for b, (p, e) in enumerate(pairs):
                E(MF % (V(R[b], 4), A(f + 4 * p, 4), A(f + 4 * e, 4) if e is not None else V(ones, 4), V(R[b], 4) if u else '0'))
            E(MF % (V(Z8, 4), A(f + 24, 4), V(ones, 4), V(Z8, 4) if u else '0'))
        E('s_barrier')
        E('s_add_u32 s%d, s%d, 4096' % (S_T0, S_PB))
        E('s_add_u32 s%d, s%d, 8192' % (S_T1, S_PB))
        for b in range(8):
            E('buffer_store_dwordx4 %s, v%d, %s, s%d offen offset:%d sc1' % (V(R[b], 4), V_L16, srd(S_WS), S_PB if b < 4 else S_T0, (b & 3) * 1024), tag='kvp')
        E('s_cmp_eq_u32 s%d, 2' % S_WAVE)
        E('s_cselect_b64 vcc, -1, 0')
        for r in range(4):
            E('v_cndmask_b32 v%d, v%d, v%d, vcc' % (T + 4 + r, R[8] + r, Z8 + r))
        E('buffer_store_dwordx4 %s, v%d, %s, s%d offen sc1' % (V(T + 4, 4), V_L16, srd(S_WS), S_T1), tag='kvp')
        G.stamp('kv partial issued')

    RK, RZ = XN, XN + 32
    red_ld = []
    for rt in range(16):
        red_ld.append('s_add_u32 s%d, s%d, %d' % (S_T0, S_SA, rt * 36864))
        red_ld.append('s_add_u32 s%d, s%d, %d' % (S_T1, S_SB, rt * 36864))
        red_ld.append('buffer_load_dwordx2 %s, v%d, %s, s%d offen sc1' % (V(RK + 2 * rt, 2), V_L16, srd(S_WS), S_T0))
        red_ld.append('buffer_load_dwordx2 %s, v%d, %s, s%d offen sc1' % (V(RZ + 2 * rt, 2), V_L16, srd(S_WS), S_T1))
    t0, t1, t2, l4 = V_T + 1, V_T + 2, V_T + 3, V_T + 4
    red_pre = [
        's_lshl_b32 s%d, s%d, 4' % (S_T2, S_H0 + 2),
        's_lshl_b32 s%d, s%d, 1' % (S_T3, S_H0),
        's_add_u32 s%d, s%d, s%d' % (S_T3, S_T3, S_T2),
        'v_lshrrev_b32 v%d, 4, v%d' % (t0, L),
        'v_lshlrev_b32 v%d, 2, v%d' % (t0, t0),
        'v_add_u32 v%d, s%d, v%d' % (t0, S_T3, t0),
        'v_add_u32 v%d, 1, v%d' % (t1, t0),
        'v_mul_u32_u24 v%d, 3641, v%d' % (t0, t0),
        'v_lshrrev_b32 v%d, 16, v%d' % (t0, t0),
        'v_mul_u32_u24 v%d, 3641, v%d' % (t1, t1),
        'v_lshrrev_b32 v%d, 16, v%d' % (t1, t1),
        's_lshl_b32 s%d, s%d, 4' % (S_T3, S_HOWN),
        's_add_u32 s%d, s%d, s%d' % (S_T3, S_T3, S_T2),
        's_sub_u32 s%d, s%d, 16' % (S_T3, S_T3),
        'v_and_b32 v%d, 15, v%d' % (t2, L),
        'v_add_u32 v%d, s%d, v%d' % (t2, S_T3, t2),
        'v_mul_u32_u24 v%d, 3641, v%d' % (t2, t2),
        'v_lshrrev_b32 v%d, 16, v%d' % (t2, t2),
        'v_lshlrev_b32 v%d, 2, v%d' % (l4, L),
        's_lshl_b32 s%d, s%d, 10' % (S_OBASE, S_H0 + 1),
        's_lshl_b32 s%d, s%d, 8' % (S_T3, S_H0),
        's_add_u32 s%d, s%d, s%d' % (S_OBASE, S_OBASE, S_T3),
        's_add_u32 s%d, s%d, s%d' % (S_OBASE, S_OBASE, S_BBASE)]
    red_sum = []
    for rt in range(1, 16):
        for base in (RK, RZ):
            red_sum.append('v_add_f32 v%d, v%d, v%d' % (base, base, base + 2 * rt))
            red_sum.append('v_add_f32 v%d, v%d, v%d' % (base + 1, base + 1, base + 2 * rt + 1))
    def red_fin():
        E('v_cmp_eq_u32 vcc, v%d, v%d' % (t0, t2))
        E('v_cndmask_b32 v%d, 0, v%d, vcc' % (RK, RK))
        E('v_cndmask_b32 v%d, 0, v%d, vcc' % (RZ, RZ))
        E('v_cmp_eq_u32 vcc, v%d, v%d' % (t1, t2))
        E('v_cndmask_b32 v%d, 0, v%d, vcc' % (RK + 1, RK + 1))
        E('v_cndmask_b32 v%d, 0, v%d, vcc' % (RZ + 1, RZ + 1))
        E('v_cvt_pk_bf16_f32 v%d, v%d, v%d' % (RK, RK, RK + 1))
        E('v_cvt_pk_bf16_f32 v%d, v%d, v%d' % (RZ, RZ, RZ + 1))
        E('buffer_store_dword v%d, v%d, %s, s%d offen sc1' % (RK, l4, srd(S_WS), S_OBASE), tag='kf')
        E('buffer_store_dword v%d, v%d, %s, s%d offen offset:512 sc1' % (RZ, l4, srd(S_WS), S_OBASE), tag='kf')

    side = {t: (stage_dma(t + D) if t + D < 27 else []) for t in range(27)}
    side[0] = G.merge(side[0], su[:20])
    side[1] = G.merge(side[1], su[20:])
    if G.OPT['prefetch']:
        side[2] = G.merge(side[2], ['s_lshl_b32 s%d, s%d, 8' % (S_T1, S_G)] + G.l2_prefetch(S_WA, S_T1, 3, 3456, 576, 242, V_T + 4, S_T0))
    side[19] = [lambda: E.wait_tag('kvp')] + side[19]
    side[20] = [lambda: one_lane_add(0)] + G.merge(side[20], red_pre)
    side[21] = side[21] + [lambda: G.poll_issue(V_FL2, V_FLG, S_DBG)]
    side[23] = [lambda: G.poll_check(V_FL2, V_FLG, 0, srdn=S_DBG, mode='count', target=16, issued=True)] + G.merge(side[23], red_ld[:32])
    side[24] = red_ld[32:]
    side[26] = red_sum + [red_fin]
    inter = {81: k_epi, 162: v_epi}
    G.run_groups(groups, side, inter)

    G.stamp('q done')
    PQV = XN + 64
    def q_phi(i):
        for sb in range(2):
            a = acc(i, sb)
            phi4(a)
            d = PQV + ((i >> 1) * 2 + sb) * 4 + (i & 1) * 2
            E('v_cvt_pk_bf16_f32 v%d, v%d, v%d' % (d, a, a + 1))
            E('v_cvt_pk_bf16_f32 v%d, v%d, v%d' % (d + 1, a + 2, a + 3))
    for i in range(4):
        q_phi(i)
    E.wait_tag('kf')
    E('s_barrier')
    one_lane_add(128)
    E('v_add_u32 v%d, 128, v%d' % (V_FLG, V_FLG))
    for i in range(4, 9):
        q_phi(i)
    for sb in range(2):
        d = PQV + (8 + sb) * 4 + 2
        E('v_mov_b32 v%d, 0' % d)
        E('v_mov_b32 v%d, 0' % (d + 1))
    G.stamp('q epi done')
    G.poll_check(V_FL2, V_FLG, 0, srdn=S_DBG, mode='count', target=16)
    G.stamp('kv ready')
    FB = 136
    K4 = XN
    E('s_mul_i32 s%d, s%d, %d' % (S_T0, S_WAVE, 6 * 1024))
    E('s_add_u32 s%d, s%d, s%d' % (S_T0, S_T0, S_BBASE))
    E('s_sub_u32 s%d, s%d, 1024' % (S_T0, S_T0))
    E('s_add_u32 s%d, s%d, 3072' % (S_T1, S_T0))
    E('s_add_u32 s%d, s%d, %d' % (S_T2, S_BBASE, 23 * 1024))
    for e in range(4):
        for h in range(2):
            for z in range(2):
                for hh in range(2):
                    d = FB + (e * 2 + z) * 4 + h * 2 + hh
                    if 0 <= e - h <= 2:
                        E('buffer_load_dword v%d, v%d, %s, s%d offen offset:%d sc1' % (d, l4, srd(S_WS), S_T1 if h else S_T0, (e - h) * 1024 + z * 512 + hh * 256))
                    else:
                        E('v_mov_b32 v%d, 0' % d)
    for e in range(2):
        for z in range(2):
            for hh in range(2):
                E('buffer_load_dword v%d, v%d, %s, s%d offen offset:%d sc1' % (K4 + (e * 2 + z) * 4 + hh, l4, srd(S_WS), S_T2, e * 1024 + z * 512 + hh * 256))
                E('v_mov_b32 v%d, 0' % (K4 + (e * 2 + z) * 4 + 2 + hh))
    wa = V_T + 1
    E('v_add_u32 v%d, s%d, v%d' % (wa, S_LDSW, V_L16))
    E('v_add_u32 v%d, %d, v%d' % (wa + 1, 2 * REG, V_L16))
    for q in range(8):
        E('ds_write_b128 v%d, %s offset:%d' % (wa, V(FB + 4 * q, 4), q * 1024))
    E.wait(lg=0)
    E('s_barrier')
    AF = 72
    for w in range(4):
        for q in range(8):
            if w == 0 and q < 2:
                continue
            E('ds_read_b128 %s, v%d offset:%d' % (A(AF + (w * 8 + q) * 4, 4), V_L16 if w < 2 else wa + 1, (w & 1) * REG + q * 1024))
    E('s_mul_i32 s%d, s%d, %d' % (S_OB, S_ROW0, 36 * 1024))
    E('s_mul_i32 s%d, s%d, 9' % (S_T0, S_G))
    E('s_lshr_b32 s%d, s%d, 1' % (S_T0, S_T0))
    E('s_lshl_b32 s%d, s%d, 11' % (S_T0, S_T0))
    E('s_add_u32 s%d, s%d, s%d' % (S_OB, S_OB, S_T0))
    E('s_add_u32 s%d, s%d, 0x%x' % (S_OB, S_OB, WS_O))
    E('s_add_u32 s%d, s%d, 4096' % (S_T0, S_OB))
    E('s_add_u32 s%d, s%d, 8192' % (S_T1, S_OB))
    E('s_lshl_b32 s%d, s%d, 2' % (S_T2, S_ROW0))
    E('s_add_u32 s%d, s%d, s%d' % (S_T2, S_T2, S_G))
    E('s_lshl_b32 s%d, s%d, 7' % (S_FL, S_T2))
    E('s_add_u32 s%d, s%d, %d' % (S_FL, S_FL, FL_O * 128))
    def afr(eb, i, z):
        if i == 4:
            return V(K4 + ((eb - 7) * 2 + z) * 4, 4)
        return A(AF + (i * 8 + (eb - 2 * i + 1) * 2 + z) * 4, 4)
    DEN = 48
    OB = 136
    def den(eb, sb):
        return DEN + ((eb * 2 + sb) % 12) * 4
    def mm(eb):
        ks = [i for i in ((eb - 1) >> 1, (eb + 1) >> 1) if 0 <= i <= 4]
        o = []
        for sb in range(2):
            for z, dst in ((1, den(eb, sb)), (0, acc(eb, sb))):
                for n, i in enumerate(ks):
                    o.append(MF % (V(dst, 4), afr(eb, i, z), V(PQV + (i * 2 + sb) * 4, 4), V(dst, 4) if n else '0'))
        return o
    def fin(eb):
        o = []
        for sb in range(2):
            a, d = acc(eb, sb), den(eb, sb)
            o += ['v_add_f32 v%d, 0x358637bd, v%d' % (d + r, d + r) for r in range(4)]
            o += ['v_rcp_f32 v%d, v%d' % (d + r, d + r) for r in range(4)]
            o += ['v_mul_f32 v%d, v%d, v%d' % (a + r, a + r, d + r) for r in range(4)]
            o.append('v_cvt_pk_bf16_f32 v%d, v%d, v%d' % (OB + sb * 20 + eb * 2, a, a + 1))
            o.append('v_cvt_pk_bf16_f32 v%d, v%d, v%d' % (OB + sb * 20 + eb * 2 + 1, a + 2, a + 3))
        return o
    for op in mm(0) + mm(1):
        E(op)
    for eb in range(9):
        for op in (G.merge(mm(eb + 2), fin(eb)) if eb + 2 < 9 else fin(eb)):
            E(op)
    odd = G.newlabel('odd')
    E('s_bitcmp1_b32 s%d, 0' % S_G)
    E('s_cbranch_scc1 %s' % odd)
    snap = E.snapshot()
    sn = G.stamp_n[0]
    for par in range(2):
        E.restore(snap)
        G.stamp_n[0] = sn
        if par:
            E.label(odd)
        for k in range(5):
            sreg = (S_OB, S_T0, S_T1)[k >> 1]
            for sb in range(2):
                off = ((k & 1) * 2 + sb) * 1024
                lo = 2 * k - par
                if lo >= 0 and lo + 1 <= 8:
                    E('buffer_store_dwordx4 %s, v%d, %s, s%d offen offset:%d sc1' % (V(OB + sb * 20 + lo * 2, 4), V_L16, srd(S_WS), sreg, off))
                elif lo < 0:
                    E('buffer_store_dwordx2 %s, v%d, %s, s%d offen offset:%d sc1' % (V(OB + sb * 20, 2), V_L16, srd(S_WS), sreg, off + 8))
                else:
                    E('buffer_store_dwordx2 %s, v%d, %s, s%d offen offset:%d sc1' % (V(OB + sb * 20 + 16, 2), V_L16, srd(S_WS), sreg, off))
        E.wait(vm=0)
        G.set_flag(S_FL, 1, V_T)
        G.stamp('o published')
        E('s_endpgm')
```

```python
import re
import copy

_REG = re.compile(r'(?<![\w.])([vas])(?:\[(\d+):(\d+)\]|(\d+))(?![\w])')
TRANS = ('v_exp_f32', 'v_log_f32', 'v_rcp_f32', 'v_rsq_f32', 'v_sqrt_f32', 'v_sin_f32', 'v_cos_f32')


def regs_of(tok):
    tok = tok.strip()
    out = set()
    for m in _REG.finditer(tok):
        k = m.group(1)
        if m.group(4) is not None:
            out.add((k, int(m.group(4))))
        else:
            for i in range(int(m.group(2)), int(m.group(3)) + 1):
                out.add((k, i))
    if re.search(r'\bvcc\b', tok):
        out.add(('s', 106)); out.add(('s', 107))
    if re.search(r'\bvcc_lo\b', tok):
        out.add(('s', 106))
    if re.search(r'\bvcc_hi\b', tok):
        out.add(('s', 107))
    if re.search(r'\bm0\b', tok):
        out.add(('s', 124))
    if re.search(r'\bexec\b', tok):
        out.add(('s', 126)); out.add(('s', 127))
    return out


def split_ops(s):
    ops, depth, cur = [], 0, ''
    for ch in s:
        if ch in '[(':
            depth += 1
        if ch in '])':
            depth -= 1
        if ch == ',' and depth == 0:
            ops.append(cur.strip()); cur = ''
        else:
            cur += ch
    if cur.strip():
        ops.append(cur.strip())
    return ops


class Ins:
    __slots__ = ('text', 'mn', 'kind', 'rd', 'wr', 'A', 'B', 'C', 'tag', 'data', 'wide')

    def __init__(self, text, tag=None):
        self.text = text
        self.tag = tag
        parts = text.split(None, 1)
        mn = parts[0]
        self.mn = mn
        ops = split_ops(parts[1]) if len(parts) > 1 else []
        R = [regs_of(o) for o in ops]
        U = lambda l: set().union(*l) if l else set()
        self.A = self.B = self.C = set()
        self.data = set()
        self.wide = False
        if mn.startswith('v_mfma'):
            self.kind = 'sgemm' if mn.endswith('_f32') and 'x4_f32' in mn else 'mfma'
            self.wr = R[0]; self.A, self.B, self.C = R[1], R[2], R[3]
            self.rd = R[1] | R[2] | R[3]
        elif mn.startswith('v_'):
            base = mn.replace('_e32', '').replace('_e64', '').replace('_sdwa', '')
            self.kind = 'trans' if base in TRANS else ('dot' if base.startswith('v_dot') else 'valu')
            self.wr = set(R[0]); self.rd = U(R[1:])
            if base.startswith('v_permlane'):
                self.wr = R[0] | R[1]; self.rd = R[0] | R[1]
            if base in ('v_fmac_f32', 'v_dot2c_f32_bf16'):
                self.rd |= R[0]
                self.C = R[0]
            if base == 'v_dot2_f32_bf16':
                self.C = R[3]
            if '_co_' in base:
                self.wr = R[0] | R[1]; self.rd = U(R[2:])
        elif mn.startswith('ds_read'):
            self.kind = 'ds_rd'; self.wr = R[0]; self.rd = U(R[1:])
        elif mn.startswith('ds_write'):
            self.kind = 'ds_wr'; self.wr = set(); self.rd = U(R)
        elif mn.startswith('buffer_load') or mn.startswith('global_load'):
            if re.search(r'\blds\b', text):
                self.kind = 'dma'; self.wr = set(); self.rd = U(R) | {('s', 124)}
            else:
                self.kind = 'vm_ld'; self.wr = R[0]; self.rd = U(R[1:])
        elif mn.startswith('buffer_store') or mn.startswith('buffer_atomic'):
            self.kind = 'vm_st'; self.wr = set(); self.rd = U(R)
            self.data = R[0]; self.wide = mn.endswith('x4') or mn.endswith('x3')
            if mn.startswith('buffer_atomic') and re.search(r'\bsc0\b', text):
                self.kind = 'vm_ld'; self.wr = R[0]
        elif mn.startswith('s_load') or mn in ('s_memtime', 's_memrealtime'):
            self.kind = 'smem'; self.wr = R[0]; self.rd = U(R[1:])
        elif mn in ('s_waitcnt', 's_barrier', 's_nop', 's_endpgm', 's_sleep', 's_setprio') or mn.startswith('s_cbranch') or mn == 's_branch':
            self.kind = 'ctl'; self.wr = set(); self.rd = set()
        elif mn.startswith('s_cmp') or mn.startswith('s_bitcmp'):
            self.kind = 'salu'; self.wr = set(); self.rd = U(R)
        elif mn.startswith('s_'):
            self.kind = 'salu'; self.wr = set(R[0]); self.rd = U(R[1:])
            if 'saveexec' in mn:
                self.wr |= {('s', 126), ('s', 127)}
        else:
            raise ValueError('unknown instruction ' + text)


VALUK = ('valu', 'trans', 'dot')
MEMK = ('ds_rd', 'ds_wr', 'vm_ld', 'vm_st', 'dma')
VMK = ('vm_ld', 'vm_st', 'dma')


def need(p, c):
    n = 0
    pv = {r for r in p.wr if r[0] != 's'}
    ps = {r for r in p.wr if r[0] == 's'}
    if p.kind in VALUK:
        if c.kind in ('mfma', 'sgemm') and pv & c.rd:
            n = max(n, 2)
        if c.kind in VMK and ps & c.rd:
            n = max(n, 5)
        if c.kind in VALUK and ps & c.rd:
            n = max(n, 4 if 'lane' in c.mn else 2)
        if c.mn.startswith(('v_readfirstlane', 'v_readlane')) and pv & c.rd:
            n = max(n, 1)
        if c.mn.startswith('v_permlane') and pv & c.rd:
            n = max(n, 2)
        if c.kind == 'salu' and ps & c.rd:
            n = max(n, 1)
        if p.kind == 'trans' and c.kind in ('valu', 'dot') and pv & c.rd:
            n = max(n, 1)
        if p.kind == 'dot' and (pv & (c.rd | c.wr)):
            if c.mn == p.mn and not (pv & (c.rd - c.C)) and pv & c.C:
                pass
            else:
                n = max(n, 3)
    if p.kind in ('mfma', 'sgemm'):
        far = 8 if p.kind == 'mfma' else 10
        if c.kind in VALUK and pv & (c.rd | c.wr):
            n = max(n, far)
        if c.kind in MEMK and pv & (c.rd | c.wr):
            n = max(n, far)
        if c.kind in ('mfma', 'sgemm'):
            if pv & (c.A | c.B):
                n = max(n, far)
            if pv & c.C and not (pv == c.C and p.mn == c.mn):
                n = max(n, far)
            if pv & c.wr and not (pv == c.C and p.mn == c.mn):
                n = max(n, far)
        if c.kind in VALUK and (p.C & c.wr):
            n = max(n, 3)
    if p.kind == 'salu' and ('s', 124) in p.wr and c.kind == 'dma':
        n = max(n, 1)
    if p.kind == 'vm_st' and p.wide and p.data & c.wr:
        n = max(n, 2)
    return n


class Emitter:
    def __init__(self):
        self.lines = []
        self.hist = []
        self.pos = 0
        self.lg = []
        self.vm = []
        self.smem = False
        self.nnop = 0
        self.nwait = 0
        self.count = 0

    def snapshot(self):
        return (list(self.hist), self.pos, list(self.lg), list(self.vm), self.smem)

    def restore(self, s):
        self.hist, self.pos, self.lg, self.vm, self.smem = list(s[0]), s[1], list(s[2]), list(s[3]), s[4]

    def raw(self, text):
        self.lines.append(text)

    def label(self, name):
        self.lines.append(name + ':')

    def comment(self, t):
        self.lines.append('    ; ' + t)

    def _put(self, ins, states=1):
        self.lines.append('    ' + ins.text)
        self.hist.append((ins, self.pos))
        self.pos += states
        self.count += 1
        if len(self.hist) > 24:
            self.hist.pop(0)

    def wait(self, vm=None, lg=None):
        parts = []
        if vm is not None and len(self.vm) > vm:
            v = min(vm, 63)
            parts.append('vmcnt(%d)' % v)
            self.vm = self.vm[len(self.vm) - v:] if v else []
        if lg is not None and self.smem:
            lg = 0
        if lg is not None and len(self.lg) > lg:
            l = min(lg, 15)
            parts.append('lgkmcnt(%d)' % l)
            self.lg = self.lg[len(self.lg) - l:] if l else []
            if l == 0:
                self.smem = False
        if parts:
            last = self.lines[-1].strip() if self.lines else ''
            if last.startswith('s_waitcnt') and self.hist and self.hist[-1][0].text == last:
                keep = [p for p in last.split()[1:] if p.split('(')[0] not in [q.split('(')[0] for q in parts]]
                t = 's_waitcnt ' + ' '.join(sorted(keep + parts, reverse=True))
                self.lines[-1] = '    ' + t
                self.hist[-1] = (Ins(t), self.hist[-1][1])
                return
            self.nwait += 1
            self._put(Ins('s_waitcnt ' + ' '.join(parts)))

    def wait_tag(self, tag):
        idx = [i for i, o in enumerate(self.vm) if o.tag == tag]
        if idx:
            self.wait(vm=len(self.vm) - 1 - idx[-1])

    def touch(self, text):
        t = regs_of(text)
        vmn = lgn = None
        for i, o in enumerate(self.vm):
            if o.wr & t:
                vmn = len(self.vm) - 1 - i
        for i, o in enumerate(self.lg):
            if o.wr & t:
                lgn = len(self.lg) - 1 - i
        self.wait(vm=vmn, lg=lgn)

    def pending_tag(self, tag):
        return any(o.tag == tag for o in self.vm)

    def __call__(self, text, tag=None):
        ins = text if isinstance(text, Ins) else Ins(text, tag)
        touch = ins.rd | ins.wr
        vmn = lgn = None
        for i, o in enumerate(self.vm):
            if o.wr & touch:
                vmn = len(self.vm) - 1 - i
        for i, o in enumerate(self.lg):
            if o.wr & touch:
                lgn = len(self.lg) - 1 - i
        if lgn is not None and self.smem:
            lgn = 0
        if vmn is not None or lgn is not None:
            self.wait(vm=vmn, lg=lgn)
        n = 0
        for p, pp in self.hist:
            d = self.pos - pp - 1
            r = need(p, ins)
            if r > d:
                n = max(n, r - d)
        if n:
            self.nnop += 1
            self._put(Ins('s_nop %d' % (n - 1)), n)
        self._put(ins)
        if ins.kind in ('ds_rd', 'ds_wr'):
            self.lg.append(ins)
        elif ins.kind in VMK:
            self.vm.append(ins)
        elif ins.kind == 'smem':
            self.smem = True
            self.lg.append(ins)
        return ins

    def fence(self):
        self._put(Ins('s_nop 9'), 10)

    def text(self):
        return '\n'.join(self.lines) + '\n'
```

```python
import sys
from emit import Emitter, Ins

NAME = 'parallel_sum__linear_attn_block__dense_activation_squared_relu__prompt'
OPT = dict(D=4, stamps=0, prefetch=1, spin=20000, nodma=0, nobar=0, noepi=0, noh=0, codepf=1, pbf16=0)
for a in sys.argv[2:]:
    k, v = a.split('=')
    assert k in OPT, k
    OPT[k] = int(v)

REG = 37440
SLOT = 6144
XU = 1040
EXTRA = 4 * REG
LDS_BYTES = 163840
WS_FLAG = 0
WS_E = 0x80000
WS_KF = 0x100000
WS_KP = 0x140000
WS_O = 0x400000
WS_H = 0x800000
WS_P = 0x2000000
WS_STAMP = 0x6000000
FL_H = 0
FL_O = 1024
FL_P = 1280

S_X, S_WA, S_WB, S_WS, S_OUT, S_B1, S_B2, S_DBG = 8, 12, 16, 20, 24, 28, 32, 36
S_WO = 4
S_PTR = 40
S_WAVE, S_G, S_RT, S_M, S_E = 62, 63, 64, 65, 66
S_LDSW = 67
S_T0, S_T1, S_T2, S_T3 = 68, 69, 70, 71
S_SO = 72
S_ABASE = 73
S_BBASE = 74
S_H0 = 75
S_HOWN = 78
S_PB = 79
S_CNT = 80
S_ROW0 = 81
S_SO2 = 82
S_OBASE = 83
S_SA, S_SB = 84, 85
S_ST = 86
S_C1, S_C2 = 88, 89
S_FL = 90
S_OB = 91
S_STB = 92
S_FL2 = 93
S_C3 = 3

def srd(n):
    return 's[%d:%d]' % (n, n + 3)
def V(n, c=1):
    return 'v%d' % n if c == 1 else 'v[%d:%d]' % (n, n + c - 1)
def A(n, c=1):
    return 'a%d' % n if c == 1 else 'a[%d:%d]' % (n, n + c - 1)
MF = 'v_mfma_f32_16x16x32_bf16 %s, %s, %s, %s'

V_LANE = 1
V_WR = 2
V_DA, V_DB = 14, 16
V_L16 = 18
V_BIAS = 19
V_FLG = 20
V_FL2 = 21
V_T = 22
XN = 32
ACC = 176
HT = 240
def xn(ks, sb):
    return XN + (ks * 2 + sb) * 4

E = Emitter()
cold = []
uid = [0]
def newlabel(p):
    uid[0] += 1
    return 'L_%s_%d' % (p, uid[0])

def mk_srd(dst, ptr, nbytes):
    E('s_mov_b32 s%d, s%d' % (dst, ptr))
    E('s_and_b32 s%d, s%d, 0xffff' % (dst + 1, ptr + 1))
    E('s_mov_b32 s%d, 0x%x' % (dst + 2, nbytes))
    E('s_mov_b32 s%d, 0x20000' % (dst + 3))

stamp_n = [0]
def stamp(name=''):
    if not OPT['stamps']:
        return
    i = stamp_n[0]
    stamp_n[0] += 1
    assert i < 32
    E.comment('stamp %d %s' % (i, name))
    E('s_memrealtime s[%d:%d]' % (S_ST, S_ST + 1))
    E('s_memtime s[94:95]')
    E.wait(lg=0)
    E('v_mov_b32 v%d, s%d' % (V_T + 9, S_ST))
    E('buffer_store_dword v%d, off, %s, s%d offset:%d' % (V_T + 9, srd(S_WS), S_STB, 4 * i))
    E('v_mov_b32 v%d, s94' % (V_T + 9))
    E('buffer_store_dword v%d, off, %s, s%d offset:%d' % (V_T + 9, srd(S_WS), S_STB, 128 + 4 * i))

def poll_issue(vtmp, voff, srdn=S_WS):
    E('buffer_load_dword v%d, v%d, %s, 0 offen sc1' % (vtmp, voff, srd(srdn)))

def poll_check(vtmp, voff, k, srdn=S_WS, mode='epoch', target=None, issued=False):
    ld = 'buffer_load_dword v%d, v%d, %s, 0 offen sc1' % (vtmp, voff, srd(srdn))
    def cmp_lines():
        if mode == 'epoch':
            return ['s_add_u32 s%d, s%d, %d' % (S_T3, S_E, k),
                    'v_subrev_u32 v%d, s%d, v%d' % (vtmp, S_T3, vtmp),
                    'v_cmp_gt_u32 vcc, 8, v%d' % vtmp]
        return ['v_cmp_le_u32 vcc, %d, v%d' % (target, vtmp)]
    if not issued:
        E(ld)
    for l in cmp_lines():
        E(l)
    slow, back = newlabel('slow'), newlabel('back')
    E('s_cmp_eq_u64 vcc, exec')
    E('s_cbranch_scc0 %s' % slow)
    E.label(back)
    loop = newlabel('spin')
    c = [slow + ':',
         '    s_mov_b32 s%d, %d' % (S_CNT, OPT['spin']),
         loop + ':',
         '    ' + ld,
         '    s_waitcnt vmcnt(0)']
    c += ['    ' + l for l in cmp_lines()]
    c += ['    s_nop 1',
          '    s_cmp_eq_u64 vcc, exec',
          '    s_cbranch_scc1 %s' % back,
          '    s_sleep 1',
          '    s_sub_u32 s%d, s%d, 1' % (S_CNT, S_CNT),
          '    s_cmp_lg_u32 s%d, 0' % S_CNT,
          '    s_cbranch_scc1 %s' % loop,
          '    s_branch %s' % back]
    cold.extend(c)

def set_flag(soff, k, vtmp):
    E('s_add_u32 s%d, s%d, %d' % (S_T3, S_E, k))
    E('v_mov_b32 v%d, s%d' % (vtmp, S_T3))
    E('buffer_store_dword v%d, off, %s, s%d sc1' % (vtmp, srd(S_WS), soff))

def lds_rd(region, slot, p, nb):
    off = region * REG + slot * SLOT + p * 2048
    win = off >> 16
    return V_WR + win * 4 + nb, off - (win << 16)

def dma_ops(stage, slot, srdn, vd, sbase, offs):
    ops = []
    if OPT['nodma'] and stage >= 6:
        return ops
    for p in range(3):
        ops.append(Ins('s_add_u32 m0, s%d, %d' % (S_LDSW, slot * SLOT + p * 2048)))
        ops.append(Ins('s_add_u32 s%d, s%d, %d' % (S_SO, sbase, offs[p])))
        ops.append(Ins('buffer_load_dwordx4 v%d, %s, s%d offen lds' % (vd, srd(srdn), S_SO), tag=('dma', stage)))
        ops.append(Ins('buffer_load_dwordx4 v%d, %s, s%d offen offset:1024 lds' % (vd + 1, srd(srdn), S_SO), tag=('dma', stage)))
    return ops

class Group:
    def __init__(self, stage, frags, mf, tags=None):
        self.stage, self.frags, self.mf = stage, frags, mf
        self.tags = tags or [('dma', stage)]

def do(op):
    if callable(op):
        op()
    else:
        E(op)

LEAD = 16
WRING = 48
def is_vmem(op):
    t = op.text if isinstance(op, Ins) else op
    return isinstance(t, str) and t.startswith(('buffer_', 'global_'))
def run_groups(groups, side, interlude=None, first=None):
    interlude = interlude or {}
    n = len(groups)
    def wreg(gi, f):
        return ((gi % 6) * 2 + f) * 4
    def read(i):
        gi, q = divmod(i, 4)
        f, j = divmod(q, 2)
        ad, imm = groups[gi].frags[f][j]
        return 'ds_read_b64_tr_b16 %s, v%d offset:%d' % (A(wreg(gi, f) + 2 * j, 2), ad, imm)
    def newstage(i):
        gi = i // 4
        return i % 4 == 0 and gi < n and (gi == 0 or groups[gi].stage != groups[gi - 1].stage)
    def barrier(i):
        for tg in groups[i // 4].tags:
            E.wait_tag(tg)
        if i == 0:
            E.wait(lg=0)
        if not OPT['nobar']:
            E('s_barrier')
    for i in range(min(LEAD, 4 * n)):
        if newstage(i):
            barrier(i)
        if i == 0:
            for op in first or []:
                do(op)
        E(read(i))
    gaps = {}
    for i in range(4 * n):
        busy = (i % 8 == 7) or newstage(i + LEAD) or newstage(i + LEAD + 1)
        if not busy:
            gaps.setdefault(groups[i // 4].stage, []).append(i)
    plan = {}
    for st, gl in gaps.items():
        sl = side.get(st, [])
        for k, op in enumerate(sl):
            plan.setdefault(gl[(k * len(gl)) // len(sl)], []).append(op)
    for gi, g in enumerate(groups):
        if gi in interlude:
            interlude[gi]()
        mf = g.mf(A(wreg(gi, 0), 4), A(wreg(gi, 1), 4))
        if gi % 2 == 0:
            E.touch(A(wreg(gi, 0), 16 if gi + 1 < n else 8))
        for q in range(4):
            i = gi * 4 + q
            E(mf[q])
            if newstage(i + LEAD + 1):
                if i + LEAD < 4 * n:
                    E(read(i + LEAD))
                for tg in groups[(i + LEAD + 1) // 4].tags:
                    E.wait_tag(tg)
                continue
            if newstage(i + LEAD):
                barrier(i + LEAD)
            if i + LEAD < 4 * n:
                E(read(i + LEAD))
            for op in plan.get(i, []):
                do(op)

def merge(*lists):
    items = []
    for li, l in enumerate(lists):
        for i, x in enumerate(l):
            items.append(((i + 0.5) / len(l), li, i, x))
    items.sort(key=lambda t: t[:3])
    return [t[3] for t in items]

def bf16r(dst, src):
    E('v_cvt_pk_bf16_f32 v%d, v%d, v%d' % (dst, src, src))
    E('v_lshlrev_b32 v%d, 16, v%d' % (dst, dst))

def l2_prefetch(srdn, sbase, nlines_row, stride, nrows, adst, va, stmp):
    rows_per = nrows // 32
    total = rows_per * nlines_row
    a, b = va, va + 1
    ops = ['s_and_b32 s%d, s%d, 31' % (stmp, S_ROW0),
           's_mul_i32 s%d, s%d, %d' % (stmp, stmp, rows_per * stride),
           's_add_u32 s%d, s%d, s%d' % (stmp, stmp, sbase)]
    magic = (65536 + nlines_row - 1) // nlines_row
    for i in range((total + 63) // 64):
        ops.append('v_add_u32 v%d, %d, v%d' % (a, 64 * i, V_LANE))
        ops.append('v_min_u32 v%d, %d, v%d' % (a, total - 1, a))
        ops.append('v_mul_u32_u24 v%d, %d, v%d' % (b, magic, a))
        ops.append('v_lshrrev_b32 v%d, 16, v%d' % (b, b))
        ops.append('v_mul_u32_u24 v%d, %d, v%d' % (b, stride - 128 * nlines_row, b))
        ops.append('v_lshl_add_u32 v%d, v%d, 7, v%d' % (a, a, b))
        ops.append('buffer_load_dword a%d, v%d, %s, s%d offen' % (adst + i, a, srd(srdn), stmp))
    return ops

def early_prefetch():
    la, lj = newlabel('pfa'), newlabel('pfj')
    E('s_cmp_eq_u32 s%d, 3' % S_M)
    E('s_cbranch_scc1 %s' % la)
    snap = E.snapshot()
    for op in l2_prefetch(S_WA, S_C1, 6, 9216, 576, 240, V_T + 4, S_T0):
        E(op)
    E('s_branch %s' % lj)
    E.restore(snap)
    E.label(la)
    E('s_lshl_b32 s%d, s%d, 8' % (S_T2, S_G))
    E('s_add_u32 s%d, s%d, 1152' % (S_T2, S_T2))
    ops = l2_prefetch(S_WA, S_T2, 3, 3456, 576, 240, V_T + 4, S_T0)
    for op in ops:
        E(op)
    E('buffer_load_dword a241, v%d, %s, s%d offen offset:1152' % (V_T + 4, srd(S_WA), S_T0))
    E.label(lj)

def prologue():
    E('s_cmp_ge_u32 s2, 256')
    E('s_cbranch_scc1 L_exit')
    if OPT['stamps']:
        E('s_memrealtime s[98:99]')
        E('s_memtime s[100:101]')
    E('s_load_dwordx2 s[40:41], s[0:1], 0')
    L = V_LANE
    if OPT['codepf']:
        E('s_getpc_b64 s[96:97]')
        E.label('L_pcref')
        E('s_lshr_b32 s%d, s2, 3' % S_T0)
        E('s_mul_i32 s%d, s%d, %d' % (S_T0, S_T0, 24 * 128))
        E('v_lshrrev_b32 v%d, 6, v0' % V_T)
        E('v_and_b32 v%d, 63, v0' % L)
        E('v_min_u32 v%d, 5, v%d' % (V_T + 2, L))
        E('v_mad_u32_u24 v%d, v%d, 6, v%d' % (V_T + 2, V_T, V_T + 2))
        E('v_lshlrev_b32 v%d, 7, v%d' % (V_T + 2, V_T + 2))
        E('v_add_u32 v%d, s%d, v%d' % (V_T + 2, S_T0, V_T + 2))
        E('v_min_u32 v%d, L_exit-L_pcref, v%d' % (V_T + 2, V_T + 2))
        E('global_load_dword a250, v%d, s[96:97]' % (V_T + 2))
    else:
        E('v_lshrrev_b32 v%d, 6, v0' % V_T)
        E('v_and_b32 v%d, 63, v0' % L)
    E('v_readfirstlane_b32 s%d, v%d' % (S_WAVE, V_T))
    E('s_lshr_b32 s%d, s2, 5' % S_RT)
    E('s_and_b32 s%d, s2, 4' % S_T0)
    E('s_lshl_b32 s%d, s%d, 1' % (S_T0, S_T0))
    E('s_add_u32 s%d, s%d, s%d' % (S_RT, S_RT, S_T0))
    t0, t1, t2, t3 = V_T, V_T + 1, V_T + 2, V_T + 3
    E('v_lshrrev_b32 v%d, 3, v%d' % (t0, L))
    E('v_and_b32 v%d, 6, v%d' % (t1, t0))
    E('v_and_b32 v%d, 7, v%d' % (t2, L))
    E('v_xor_b32 v%d, v%d, v%d' % (t1, t1, t2))
    E('v_lshlrev_b32 v%d, 4, v%d' % (t1, t1))
    E('v_mul_u32_u24 v%d, 1152, v%d' % (V_DB, t0))
    E('v_add_u32 v%d, v%d, v%d' % (V_DB, V_DB, t1))
    E('v_add_u32 v%d, %d, v%d' % (t3, 8 * 1152 - XU, V_DB))
    E('s_mul_i32 s%d, s%d, %d' % (S_LDSW, S_WAVE, REG))
    E('s_lshl_b32 s%d, s%d, 2' % (S_ROW0, S_RT))
    E('s_add_u32 s%d, s%d, s%d' % (S_ROW0, S_ROW0, S_WAVE))
    E('s_mul_i32 s%d, s%d, %d' % (S_T1, S_ROW0, 32 * 1152))
    E('s_mov_b32 s%d, 0x%x' % (S_X + 2, 2048 * 1152))
    E('s_mov_b32 s%d, 0x20000' % (S_X + 3))
    E.wait(lg=0)
    E('s_mov_b32 s%d, s40' % S_X)
    E('s_and_b32 s%d, s41, 0xffff' % (S_X + 1))
    def xdma(sb, c):
        return ['s_add_u32 m0, s%d, %d' % (S_LDSW, (18 * sb + 2 * c) * XU),
                's_add_u32 s%d, s%d, %d' % (S_SO, S_T1, sb * 16 * 1152 + 128 * c),
                Ins('buffer_load_dwordx4 v%d, %s, s%d offen lds' % (V_DB, srd(S_X), S_SO), tag=('x', sb, c // 3)),
                Ins('buffer_load_dwordx4 v%d, %s, s%d offen offset:%d lds' % (t3, srd(S_X), S_SO, XU), tag=('x', sb, c // 3))]
    for c in range(9):
        for op in xdma(0, c):
            E(op)
        if c == 0:
            E('s_load_dwordx16 s[40:55], s[0:1], 0')
            E('s_load_dwordx4 s[56:59], s[0:1], 64')
            E('s_load_dwordx2 s[60:61], s[0:1], 80')
    E('s_and_b32 s%d, s2, 3' % S_G)
    E('s_lshr_b32 s%d, s2, 3' % S_M)
    E('s_and_b32 s%d, s%d, 3' % (S_M, S_M))
    n0 = len(E.lines)
    rec = []
    global E_rec
    setup_ops = capture(setup_rest)
    x1 = [op for c in range(9) for op in xdma(1, c)]
    E.wait(lg=0)
    for op in merge(setup_ops, x1):
        do(op)
    if OPT['stamps']:
        E('s_lshl_b32 s%d, s2, 2' % S_STB)
        E('s_add_u32 s%d, s%d, s%d' % (S_STB, S_STB, S_WAVE))
        E('s_lshl_b32 s%d, s%d, 8' % (S_STB, S_STB))
        E('s_add_u32 s%d, s%d, 0x%x' % (S_STB, S_STB, WS_STAMP))
        stamp_n[0] = 1
        E('v_mov_b32 v%d, s98' % (V_T + 9))
        E('buffer_store_dword v%d, off, %s, s%d' % (V_T + 9, srd(S_WS), S_STB))
        E('v_mov_b32 v%d, s100' % (V_T + 9))
        E('buffer_store_dword v%d, off, %s, s%d offset:128' % (V_T + 9, srd(S_WS), S_STB))
    stamp('x issued')
    layernorm()

def capture(fn):
    global E
    real = E
    ops = []
    class Rec:
        def __call__(self, t, tag=None):
            ops.append(Ins(t, tag) if tag else t)
    E = Rec()
    fn()
    E = real
    out, i = [], 0
    while i < len(ops):
        o = ops[i]
        if isinstance(o, str) and o.startswith('s_cmp'):
            j = max(k for k in range(i, len(ops)) if isinstance(ops[k], str) and ops[k].startswith('s_cselect') and not any(isinstance(x, str) and x.startswith('s_cmp') for x in ops[i + 1:k]))
            blk = ops[i:j + 1]
            out.append(lambda blk=blk: [E(x) for x in blk])
            i = j + 1
        else:
            out.append(o)
            i += 1
    return out

XAD = ACC + 40
ONES = ACC + 48
ONEF = ACC + 46
V_BLD = ACC + 44
V_BAD = ACC + 45
SEL = ACC + 52
LNT = ACC + 60
S_DM = 32
def setup_rest():
    L = V_LANE
    t0, t1 = V_T, V_T + 1
    mk_srd(S_WS, S_PTR + 20, 0x10000000)
    mk_srd(S_B1, S_PTR + 10, 4608 * 2)
    E('s_lshl_b32 s%d, s%d, 7' % (S_T0, S_RT))
    E('s_add_u32 s%d, s%d, 0x%x' % (S_T0, S_T0, WS_E))
    E('buffer_load_dword v%d, off, %s, s%d sc1' % (V_FL2, srd(S_WS), S_T0))
    E('s_mul_i32 s%d, s%d, 3' % (S_T0, S_G))
    E('s_add_u32 s%d, s%d, s%d' % (S_T0, S_T0, S_M))
    E('s_mul_i32 s%d, s%d, 768' % (S_C1, S_T0))
    E('s_mul_i32 s%d, s%d, 192' % (S_T2, S_WAVE))
    E('s_add_u32 s%d, s%d, s%d' % (S_T3, S_T2, S_C1))
    E('v_min_u32 v%d, 47, v%d' % (V_BAD, L))
    E('v_lshlrev_b32 v%d, 2, v%d' % (V_T + 4, V_BAD))
    E('buffer_load_dword v%d, v%d, %s, s%d offen' % (V_BLD, V_T + 4, srd(S_B1), S_T3))
    E('v_lshlrev_b32 v%d, 3, v%d' % (V_BAD, V_BAD))
    E('s_lshl_b32 s%d, s%d, 1' % (S_T2, S_T2))
    E('s_add_u32 s%d, s%d, %d' % (S_T2, S_T2, EXTRA))
    E('v_add_u32 v%d, s%d, v%d' % (V_BAD, S_T2, V_BAD))
    E('s_mul_i32 s%d, s%d, %d' % (S_T0, S_WAVE, 48 * 9216))
    E('s_add_u32 s%d, s%d, s%d' % (S_T0, S_T0, S_C1))
    E('s_mul_i32 s%d, s%d, %d' % (S_T2, S_WAVE, 16 * 3456))
    E('s_lshl_b32 s%d, s%d, 8' % (S_T3, S_G))
    E('s_add_u32 s%d, s%d, s%d' % (S_T2, S_T2, S_T3))
    E('s_add_u32 s%d, s%d, 1152' % (S_T2, S_T2))
    E('s_cmp_eq_u32 s%d, 3' % S_M)
    E('s_cselect_b32 s%d, s%d, s%d' % (S_ABASE, S_T2, S_T0))
    E('s_cselect_b32 s%d, s%d, s%d' % (S_WA, S_PTR + 2, S_PTR + 8))
    E('s_cselect_b32 s%d, s%d, s%d' % (S_WA + 1, S_PTR + 3, S_PTR + 9))
    E('s_mov_b32 s%d, %d' % (S_T0, 576 * 9216))
    E('s_cselect_b32 s%d, %d, s%d' % (S_WA + 2, 576 * 3456, S_T0))
    E('s_mov_b32 s%d, %d' % (S_T0, 192 * 9216 - 2 * 16 * 9216))
    E('s_cselect_b32 s%d, %d, s%d' % (S_SA, 64 * 3456 - 2 * 128, S_T0))
    E('s_mov_b32 s%d, %d' % (S_T0, 16 * 9216))
    E('s_cselect_b32 s%d, %d, s%d' % (S_SB, 128, S_T0))
    E('s_mov_b32 s%d, %d' % (S_T0, 9216))
    E('s_cselect_b32 s%d, %d, s%d' % (S_T0, 3456, S_T0))
    E('s_cselect_b32 s%d, s%d, 0' % (S_C3, S_G))
    E('s_and_b32 s%d, s%d, 0xffff' % (S_WA + 1, S_WA + 1))
    E('s_mov_b32 s%d, 0x20000' % (S_WA + 3))
    E('v_mul_u32_u24 v%d, s%d, v%d' % (V_DA, S_T0, t0))
    E('v_add_u32 v%d, v%d, v%d' % (V_DA, V_DA, t1))
    E('s_lshl_b32 s%d, s%d, 3' % (S_T0, S_T0))
    E('s_sub_u32 s%d, s%d, 1024' % (S_T0, S_T0))
    E('v_add_u32 v%d, s%d, v%d' % (V_DA + 1, S_T0, V_DA))
    E('v_add_u32 v%d, %d, v%d' % (V_DB + 1, 8 * 1152 - 1024, V_DB))
    E('v_lshlrev_b32 v%d, 4, v%d' % (V_L16, L))
    a, b, c = V_T + 4, V_T + 5, V_T + 6
    E('v_lshrrev_b32 v%d, 2, v%d' % (a, L))
    E('v_lshlrev_b32 v%d, 7, v%d' % (a, a))
    E('v_and_b32 v%d, 3, v%d' % (b, L))
    E('v_lshl_add_u32 v%d, v%d, 3, v%d' % (a, b, a))
    E('v_bfe_u32 v%d, v%d, 3, 2' % (b, L))
    for nb in range(4):
        E('s_add_u32 s%d, s%d, %d' % (S_T0, S_C3, nb))
        E('s_and_b32 s%d, s%d, 3' % (S_T2, S_T0))
        E('s_lshr_b32 s%d, s%d, 2' % (S_T0, S_T0))
        E('s_lshl_b32 s%d, s%d, 11' % (S_T0, S_T0))
        E('v_xor_b32 v%d, s%d, v%d' % (c, S_T2, b))
        E('v_lshl_add_u32 v%d, v%d, 5, v%d' % (c, c, a))
        E('v_add_u32 v%d, s%d, v%d' % (V_WR + nb, S_T0, c))
    for win in (1, 2):
        for nb in range(4):
            E('v_add_u32 v%d, 0x%x, v%d' % (V_WR + win * 4 + nb, win << 16, V_WR + nb))
    E('v_bfe_u32 v%d, v%d, 3, 1' % (a, L))
    E('v_mul_u32_u24 v%d, %d, v%d' % (a, XU, a))
    E('v_and_b32 v%d, 7, v%d' % (b, L))
    E('v_lshl_add_u32 v%d, v%d, 7, v%d' % (a, b, a))
    E('v_lshrrev_b32 v%d, 4, v%d' % (b, L))
    E('v_lshl_add_u32 v%d, v%d, 3, v%d' % (a, b, a))
    E('v_add_u32 v%d, s%d, v%d' % (a, S_LDSW, a))
    E('v_bfe_u32 v%d, v%d, 1, 2' % (b, L))
    for p in range(4):
        E('v_xor_b32 v%d, %d, v%d' % (c, p, b))
        E('v_lshl_add_u32 v%d, v%d, 5, v%d' % (XAD + p, c, a))
    for i in range(4):
        E('v_mov_b32 v%d, 0x3f803f80' % (ONES + i))
    E('v_mov_b32 v%d, 1.0' % ONEF)
    for r in range(4):
        m = sum(1 << (20 * g + r) for g in range(4))
        E('s_mov_b32 s%d, 0x%x' % (S_DM + 2 * r, m & 0xffffffff))
        E('s_mov_b32 s%d, 0x%x' % (S_DM + 2 * r + 1, m >> 32))
    for i in (0, 1, 4, 5):
        E('v_mov_b32 v%d, 0' % (SEL + i))
    E('v_mov_b32 v%d, 0x3f80' % a)
    for h in range(2):
        E('v_cndmask_b32 v%d, 0, v%d, s[%d:%d]' % (SEL + 2 + h, a, S_DM + 4 * h, S_DM + 4 * h + 1))
        E('v_cndmask_b32 v%d, v%d, v%d, s[%d:%d]' % (SEL + 2 + h, SEL + 2 + h, ONEF, S_DM + 4 * h + 2, S_DM + 4 * h + 3))

def layernorm():
    def S_(sb):
        return ACC + sb * 20
    def rd(sb, part):
        ops = [lambda: E.wait_tag(('x', sb, part))]
        for ks in range(6 * part, 6 * part + 6):
            for j in range(2):
                p = 2 * (ks & 1) + j
                ops.append('ds_read_b64 %s, v%d offset:%d' % (V(xn(ks, sb) + 2 * j, 2), XAD + p, (18 * sb + 2 * (ks >> 1)) * XU))
        return ops
    def st(sb, part):
        S = S_(sb)
        ops = []
        for ks in range(6 * part, 6 * part + 6):
            x = V(xn(ks, sb), 4)
            ops.append(MF % (V(S + 4, 4), x, x, V(S + 4, 4) if ks else '0'))
            ops.append(MF % (V(S, 4), V(ONES, 4), x, V(S, 4) if ks else '0'))
        return ops
    def stats(sb):
        return rd(sb, 0) + merge(rd(sb, 1), st(sb, 0)) + merge(rd(sb, 2), st(sb, 1)) + st(sb, 2)
    def fin(sb):
        S = S_(sb)
        mean, var, t = S + 14, S + 15, S + 16
        o = []
        for r in range(4):
            o.append('v_cndmask_b32 v%d, %s, v%d, s[%d:%d]' % (t, 'v%d' % t if r else '0', S + 4 + r, S_DM + 2 * r, S_DM + 2 * r + 1))
        o.append('v_mfma_f32_16x16x4_f32 %s, v%d, v%d, 0' % (V(S + 8, 4), ONEF, t))
        o.append('v_mul_f32 v%d, 0x%x, v%d' % (mean, 0x3ae38e39, S))
        o.append('v_cvt_pk_bf16_f32 v%d, v%d, v%d' % (t, mean, mean))
        o.append('v_lshlrev_b32 v%d, 16, v%d' % (t, t))
        for r in range(4):
            o.append('v_xor_b32 v%d, 0x80000000, v%d' % (S + r, t))
        o.append('v_mul_f32 v%d, 0x%x, v%d' % (var, 0x3ae38e39, S + 8))
        o.append('v_fma_f32 v%d, -v%d, v%d, v%d' % (var, mean, mean, var))
        o.append('v_max_f32 v%d, 0, v%d' % (var, var))
        def rr():
            return ['v_cvt_pk_bf16_f32 v%d, v%d, v%d' % (var, var, var), 'v_lshlrev_b32 v%d, 16, v%d' % (var, var)]
        o += rr()
        o.append('v_add_f32 v%d, 0x3727c5ac, v%d' % (var, var))
        o += rr()
        o.append('v_sqrt_f32 v%d, v%d' % (var, var))
        o += rr()
        o.append('v_rcp_f32 v%d, v%d' % (S + 12, var))
        return o
    def norm(sb):
        S = S_(sb)
        NQ = 5
        ops = []
        def mm(n):
            ks, j = divmod(n, 2)
            return MF % (V(LNT + (n % NQ) * 4, 4), V(SEL + 2 - 2 * j, 4), V(xn(ks, sb), 4), V(S, 4))
        def vv(n):
            ks, j = divmod(n, 2)
            q = LNT + (n % NQ) * 4
            return ['v_mul_f32 v%d, v%d, v%d' % (q + i, q + i, S + 12) for i in range(4)] + [
                    'v_cvt_pk_bf16_f32 v%d, v%d, v%d' % (xn(ks, sb) + 2 * j, q, q + 1),
                    'v_cvt_pk_bf16_f32 v%d, v%d, v%d' % (xn(ks, sb) + 2 * j + 1, q + 2, q + 3)]
        LAG = 3
        for n in range(36 + LAG):
            if n < 36:
                ops.append(mm(n))
            if n >= LAG:
                ops += vv(n - LAG)
        return ops
    wd = ['s_mov_b32 s%d, s%d' % (S_SO, S_ABASE)]
    for t in range(3):
        for p in range(3):
            wd.append('s_add_u32 m0, s%d, %d' % (S_LDSW, t * SLOT + p * 2048))
            if t or p:
                wd.append('s_add_u32 s%d, s%d, s%d' % (S_SO, S_SO, S_SB if p else S_SA))
            wd.append(Ins('buffer_load_dwordx4 v%d, %s, s%d offen lds' % (V_DA, srd(S_WA), S_SO), tag=('dma', t)))
            wd.append(Ins('buffer_load_dwordx4 v%d, %s, s%d offen offset:1024 lds' % (V_DA + 1, srd(S_WA), S_SO), tag=('dma', t)))
    for op in stats(0):
        do(op)
    if OPT['stamps'] == 3: stamp('stats0')
    s1 = stats(1)
    for op in merge(fin(0), s1[:13], wd[:9]):
        do(op)
    for op in merge(norm(0), s1[13:] + fin(1), wd[9:]):
        do(op)
    if OPT['stamps'] == 3: stamp('norm0')
    E('v_readfirstlane_b32 s%d, v%d' % (S_E, V_FL2))
    b0 = V_T + 6
    E('v_lshlrev_b32 v%d, 16, v%d' % (b0, V_BLD))
    E('v_and_b32 v%d, 0xffff0000, v%d' % (b0 + 1, V_BLD))
    E('ds_write_b64 v%d, %s' % (V_BAD, V(b0, 2)))
    if OPT['prefetch']:
        early_prefetch()
    for op in norm(1):
        do(op)
    stamp('ln done')

def mlp():
    D = OPT['D']
    su = []
    def mk_srd_l(dst, ptr, nbytes):
        return ['s_mov_b32 s%d, s%d' % (dst, ptr), 's_and_b32 s%d, s%d, 0xffff' % (dst + 1, ptr + 1),
                's_mov_b32 s%d, 0x%x' % (dst + 2, nbytes), 's_mov_b32 s%d, 0x20000' % (dst + 3)]
    su += mk_srd_l(S_WB, S_PTR + 12, 4608 * 1152)
    su += mk_srd_l(S_B2, S_PTR + 14, 576 * 2)
    su += mk_srd_l(S_OUT, S_PTR + 16, 2048 * 1152)
    su += mk_srd_l(S_WO, S_PTR + 4, 576 * 1152)
    su += [
        's_mul_i32 s%d, s%d, %d' % (S_C2, S_G, 1152 * 1152),
        's_mul_i32 s%d, s%d, 384' % (S_T1, S_M),
        's_add_u32 s%d, s%d, s%d' % (S_C2, S_C2, S_T1),
        's_mul_i32 s%d, s%d, %d' % (S_BBASE, S_WAVE, 16 * 1152),
        's_add_u32 s%d, s%d, s%d' % (S_BBASE, S_BBASE, S_C2),
        's_lshl_b32 s%d, s%d, 2' % (S_T0, S_RT),
        's_add_u32 s%d, s%d, s%d' % (S_T0, S_T0, S_G),
        's_mul_i32 s%d, s%d, %d' % (S_T1, S_T0, 3 * 4 * 6 * 4096),
        's_mul_i32 s%d, s%d, %d' % (S_T2, S_WAVE, 6 * 4096),
        's_add_u32 s%d, s%d, s%d' % (S_T1, S_T1, S_T2)]
    su += ['s_add_u32 s%d, s%d, 0x%x' % (S_H0 + mm, S_T1, WS_H + mm * 4 * 6 * 4096) for mm in range(3)]
    su += ['s_mul_i32 s%d, s%d, %d' % (S_T2, S_M, 4 * 6 * 4096),
           's_add_u32 s%d, s%d, s%d' % (S_HOWN, S_H0, S_T2),
           's_lshl_b32 s%d, s%d, 2' % (S_T0, S_T0),
           's_add_u32 s%d, s%d, s%d' % (S_T0, S_T0, S_WAVE),
           's_lshl_b32 s%d, s%d, 9' % (S_T0, S_T0),
           'v_min_u32 v%d, 2, v%d' % (V_FLG, V_LANE),
           'v_lshlrev_b32 v%d, 7, v%d' % (V_FLG, V_FLG),
           'v_add_u32 v%d, s%d, v%d' % (V_FLG, S_T0, V_FLG),
           's_lshl_b32 s%d, s%d, 7' % (S_T1, S_M),
           's_add_u32 s%d, s%d, s%d' % (S_FL, S_T0, S_T1),
           's_lshl_b32 s%d, s%d, 2' % (S_T1, S_M),
           's_add_u32 s%d, s%d, s%d' % (S_T1, S_T1, S_G),
           's_mul_i32 s%d, s%d, 96' % (S_C1, S_T1),
           's_and_b32 s%d, s%d, 0xffffff80' % (S_T1, S_C1),
           's_mul_i32 s%d, s%d, %d' % (S_OBASE, S_WAVE, 48 * 1152),
           's_add_u32 s%d, s%d, s%d' % (S_OBASE, S_OBASE, S_T1)]
    E('v_lshrrev_b32 v%d, 4, v%d' % (V_BIAS, V_LANE))
    E('v_lshlrev_b32 v%d, 4, v%d' % (V_BIAS, V_BIAS))
    E('v_add_u32 v%d, %d, v%d' % (V_BIAS, EXTRA, V_BIAS))

    def stage_dma(t):
        if t < 18:
            ch, st = divmod(t, 3)
            return dma_ops(t, t % 6, S_WA, V_DA, S_ABASE, [(192 * st + 16 * p) * 9216 + 128 * ch for p in range(3)])
        if t < 36:
            ch, mm = divmod(t - 18, 3)
            return dma_ops(t, t % 6, S_WB, V_DB, S_BBASE, [(384 * mm + 64 * ch) * 1152 + 128 * p for p in range(3)])
        th, ln = divmod(t - 36, 2)
        return dma_ops(t, t % 6, S_WO, V_DB, S_OBASE, [(192 * th + 16 * p) * 1152 + 128 * ln for p in range(3)])

    def acc1(ch, nb, sb):
        return ACC + (ch & 1) * 32 + (nb * 2 + sb) * 4
    def bias_reads(ch, nbs=range(4)):
        return ['ds_read_b128 %s, v%d offset:%d' % (V(acc1(ch, nb, sb), 4), V_BIAS, (ch * 64 + nb * 16) * 4)
                for nb in nbs for sb in range(2)]
    def epi(ch):
        ops = ['s_add_u32 s%d, s%d, %d' % (S_SO2, S_HOWN, ch * 4096)]
        for kl in range(2):
            for sb in range(2):
                T = HT + (kl * 2 + sb) * 4
                for h in range(2):
                    a = acc1(ch, 2 * kl + h, sb)
                    for i in range(4):
                        ops.append('v_mul_f32 v%d, v%d, |v%d|' % (a + i, a + i, a + i))
                    ops.append('v_cvt_pk_bf16_f32 v%d, v%d, v%d' % (T + 2 * h, a, a + 1))
                    ops.append('v_cvt_pk_bf16_f32 v%d, v%d, v%d' % (T + 2 * h + 1, a + 2, a + 3))
                for i in range(4):
                    ops.append('v_pk_max_i16 v%d, v%d, 0' % (T + i, T + i))
                ops.append(Ins('buffer_store_dwordx4 %s, v%d, %s, s%d offen offset:%d sc1' % (V(T, 4), V_L16, srd(S_WS), S_SO2, (kl * 2 + sb) * 1024), tag=('h', ch)))
            if ch + 2 < 6:
                ops += bias_reads(ch + 2, (2 * kl, 2 * kl + 1))
        return ops
    def hstage(u):
        return WRING + (u % 6) * 16
    def hloads(u):
        ch, mm = divmod(u, 3)
        ops = ['s_add_u32 s%d, s%d, %d' % (S_T2, S_H0 + mm, ch * 4096)]
        for f in range(4):
            ops.append('buffer_load_dwordx4 %s, v%d, %s, s%d offen offset:%d sc1' % (A(hstage(u) + 4 * f, 4), V_L16, srd(S_WS), S_T2, f * 1024))
        return ops
    def acc2(nb, sb):
        return XN + (nb * 2 + sb) * 4

    groups = []
    for t in range(18):
        ch, st = divmod(t, 3)
        for nb in range(4):
            for kp in range(3):
                fr = []
                for f in range(2):
                    ksl = 2 * kp + f
                    fr.append([lds_rd((2 * ksl + j) // 3, t % 6, (2 * ksl + j) % 3, nb) for j in range(2)])
                def mf(w0, w1, ch=ch, nb=nb, ks=6 * st + 2 * kp):
                    o = []
                    for sb in range(2):
                        a = V(acc1(ch, nb, sb), 4)
                        o.append(MF % (a, w0, V(xn(ks, sb), 4), a))
                        o.append(MF % (a, w1, V(xn(ks + 1, sb), 4), a))
                    return o
                groups.append(Group(t, fr, mf))
    for u in range(18):
        t = 18 + u
        for nbl in range(12):
            fr = [[lds_rd(2 * kl + j, t % 6, nbl >> 2, nbl & 3) for j in range(2)] for kl in range(2)]
            def mf(w0, w1, u=u, nbl=nbl):
                o = []
                for sb in range(2):
                    a = V(acc2(nbl, sb), 4)
                    o.append(MF % (a, w0, A(hstage(u) + sb * 4, 4), a if u else '0'))
                    o.append(MF % (a, w1, A(hstage(u) + 8 + sb * 4, 4), a))
                return o
            groups.append(Group(t, fr, mf))

    extra = {t: [] for t in range(36)}
    extra[0] += su[:len(su) // 2]
    extra[1] += su[len(su) // 2:] + bias_reads(1)
    if OPT['prefetch']:
        pf = l2_prefetch(S_WB, S_C2, 3, 1152, 1152, 244, V_T + 4, S_T0)
        extra[2] += pf[:10]
        extra[5] += pf[10:]
        extra[8] += ['s_and_b32 s%d, s%d, 0xffffff80' % (S_T1, S_C1)] + l2_prefetch(S_WO, S_T1, 2, 1152, 576, 246, V_T + 4, S_T0)
    for ch in range(6):
        e = epi(ch) if not OPT['noepi'] else []
        n = len(e)
        c1, c2 = n // 3, (n * 2) // 3
        extra[3 * ch + 3] += e[:c1]
        extra[3 * ch + 4] += e[c1:c2]
        extra[3 * ch + 5] += e[c2:]
    def publish(ch, k):
        def f():
            E.wait_tag(('h', ch))
            set_flag(S_FL, k, V_T)
        return f
    for k, ch in enumerate((1, 3, 5), 1):
        tp = 3 * ch + 7
        extra[tp].append(publish(ch, k))
        extra[tp + 2].append(lambda: poll_issue(V_FL2, V_FLG))
        extra[tp + 4].insert(0, lambda k=k: poll_check(V_FL2, V_FLG, k, issued=True))
        for i, u in enumerate(range(6 * (k - 1), 6 * k)):
            extra[tp + 4 + i] += hloads(u) if not OPT['noh'] else []
    XR = 128
    BR = 140
    OV = 148
    PR = 180
    xo, g8, V_FP = V_T + 1, V_T + 2, V_T + 3
    tp = [
        's_mul_i32 s%d, s%d, 36' % (S_T0, S_ROW0),
        's_mul_i32 s%d, s%d, 12' % (S_T1, S_M),
        's_add_u32 s%d, s%d, s%d' % (S_T0, S_T0, S_T1),
        's_lshl_b32 s%d, s%d, 13' % (S_PB, S_T0),
        's_add_u32 s%d, s%d, 0x%x' % (S_PB, S_PB, WS_P),
        's_mul_i32 s%d, s%d, 3' % (S_T0, S_ROW0),
        's_add_u32 s%d, s%d, s%d' % (S_T0, S_T0, S_M),
        's_lshl_b32 s%d, s%d, 9' % (S_T0, S_T0),
        's_add_u32 s%d, s%d, %d' % (S_T0, S_T0, FL_P * 128),
        's_lshl_b32 s%d, s%d, 7' % (S_T1, S_G),
        's_add_u32 s%d, s%d, s%d' % (S_FL2, S_T0, S_T1),
        'v_min_u32 v%d, 3, v%d' % (V_FLG, V_LANE),
        'v_lshlrev_b32 v%d, 7, v%d' % (V_FLG, V_FLG),
        'v_add_u32 v%d, s%d, v%d' % (V_FP, S_T0, V_FLG),
        's_lshl_b32 s%d, s%d, 9' % (S_T0, S_ROW0),
        's_add_u32 s%d, s%d, %d' % (S_T0, S_T0, FL_O * 128),
        'v_add_u32 v%d, s%d, v%d' % (V_FLG, S_T0, V_FLG),
        'v_and_b32 v%d, 15, v%d' % (xo, V_LANE),
        'v_mul_u32_u24 v%d, 1152, v%d' % (xo, xo),
        'v_lshrrev_b32 v%d, 4, v%d' % (g8, V_LANE),
        'v_lshlrev_b32 v%d, 3, v%d' % (g8, g8),
        'v_add_u32 v%d, v%d, v%d' % (xo, xo, g8),
        's_mul_i32 s%d, s%d, %d' % (S_C2, S_ROW0, 32 * 1152),
        's_add_u32 s%d, s%d, s%d' % (S_C2, S_C2, S_C1),
        's_add_u32 s%d, s%d, %d' % (S_OB, S_C2, 16 * 1152),
        's_mul_i32 s%d, s%d, %d' % (S_HOWN, S_ROW0, 36 * 1024),
        's_add_u32 s%d, s%d, 0x%x' % (S_HOWN, S_HOWN, WS_O)]
    extra[27] += tp[:14]
    extra[28] += tp[14:]
    for i in range(3):
        for sb in range(2):
            extra[31].append('buffer_load_dwordx2 %s, v%d, %s, s%d offen offset:%d' % (V(XR + (i * 2 + sb) * 2, 2), xo, srd(S_X), S_OB if sb else S_C2, 32 * i))
        extra[31].append('buffer_load_dwordx2 %s, v%d, %s, s%d offen offset:%d' % (V(BR + i * 2, 2), g8, srd(S_B2), S_C1, 32 * i))
    extra[35].insert(0, lambda: poll_issue(V_FL2, V_FLG))
    side = {}
    for t in range(36):
        d = stage_dma(t + D)
        if t == 0 and D == 4:
            d = stage_dma(3) + d
        side[t] = merge(d, extra[t]) if d and extra[t] else (d or extra[t])
    inter = {}
    if OPT['stamps'] == 1:
        inter[18 * 12] = lambda: stamp('gemm1 done')
    if OPT['stamps'] == 2:
        for t in list(range(2, 36, 2)):
            inter[t * 12] = lambda t=t: stamp('st%d' % t)
    run_groups(groups, side, inter, first=bias_reads(0))
    stamp('gemm2 done')

    def ofrag(ks, sb):
        if ks < 14:
            return A(144 + (ks * 2 + sb) * 4, 4)
        return V(OV + ((ks - 14) * 2 + sb) * 4, 4)
    lbl = [newlabel('tail') for _ in range(4)]
    for g in range(1, 4):
        E('s_cmp_eq_u32 s%d, %d' % (S_G, g))
        E('s_cbranch_scc1 %s' % lbl[g])
    snap = E.snapshot()
    sn = stamp_n[0]
    for g in range(4):
        E.restore(snap)
        stamp_n[0] = sn
        E.label(lbl[g])
        E.fence()
        order = [nbl for nbl in range(12) if nbl // 3 != g]
        for nbl in order:
            E('s_add_u32 s%d, s%d, %d' % (S_SO2, S_PB, nbl * 8192 + g * 2048))
            a0, a1 = acc2(nbl, 0), acc2(nbl, 1)
            if OPT['pbf16']:
                E('v_cvt_pk_bf16_f32 v%d, v%d, v%d' % (a0, a0, a0 + 1))
                E('v_cvt_pk_bf16_f32 v%d, v%d, v%d' % (a0 + 1, a0 + 2, a0 + 3))
                E('v_cvt_pk_bf16_f32 v%d, v%d, v%d' % (a0 + 2, a1, a1 + 1))
                E('v_cvt_pk_bf16_f32 v%d, v%d, v%d' % (a0 + 3, a1 + 2, a1 + 3))
                E('buffer_store_dwordx4 %s, v%d, %s, s%d offen sc1' % (V(a0, 4), V_L16, srd(S_WS), S_SO2), tag='pst')
            else:
                E('buffer_store_dwordx4 %s, v%d, %s, s%d offen sc1' % (V(a0, 4), V_L16, srd(S_WS), S_SO2), tag='pst')
                E('buffer_store_dwordx4 %s, v%d, %s, s%d offen offset:1024 sc1' % (V(a1, 4), V_L16, srd(S_WS), S_SO2), tag='pst')
        stamp('partials issued')
        poll_check(V_FL2, V_FLG, 1, issued=True)
        stamp('o ready')
        b0 = (0, 3, 2, 1)[g]
        two = (b0 + 2) >= 4
        E('s_barrier')
        late = []
        for t in range(36 + D, 42):
            if two or (t - 36) % 2 == 0:
                late += stage_dma(t)
        ol = []
        for ks in range(18):
            if ks % 2 == 0:
                ol.append('s_add_u32 s%d, s%d, %d' % (S_T2, S_HOWN, ks * 2048))
            for sb in range(2):
                ol.append('buffer_load_dwordx4 %s, v%d, %s, s%d offen offset:%d sc1' % (ofrag(ks, sb), V_L16, srd(S_WS), S_T2, ((ks & 1) * 2 + sb) * 1024))
        fold = []
        for i in range(3):
            for sb in range(2):
                a = acc2(3 * g + i, sb)
                for h in range(2):
                    for src in (XR + (i * 2 + sb) * 2 + h, BR + i * 2 + h):
                        fold.append('v_lshlrev_b32 v%d, 16, v%d' % (V_T + 4, src))
                        fold.append('v_and_b32 v%d, 0xffff0000, v%d' % (V_T + 5, src))
                        fold.append('v_add_f32 v%d, v%d, v%d' % (a + 2 * h, a + 2 * h, V_T + 4))
                        fold.append('v_add_f32 v%d, v%d, v%d' % (a + 2 * h + 1, a + 2 * h + 1, V_T + 5))
        for op in merge(ol[:30] + late + ol[30:], fold):
            E(op)
        E.wait_tag('pst')
        set_flag(S_FL2, 1, V_T)
        stamp('partials published')
        pg = []
        for th in range(3):
            for i in range(3):
                bi = b0 + i
                for kp in range(3):
                    fr = []
                    for f in range(2):
                        ksl = 2 * kp + f
                        fr.append([lds_rd((2 * ksl + j) // 3, 2 * th + (bi >> 2), (2 * ksl + j) % 3, bi & 3) for j in range(2)])
                    def mf(w0, w1, i=i, ks=6 * th + 2 * kp):
                        o = []
                        for sb in range(2):
                            a = V(acc2(3 * g + i, sb), 4)
                            o.append(MF % (a, w0, ofrag(ks, sb), a))
                            o.append(MF % (a, w1, ofrag(ks + 1, sb), a))
                        return o
                    pg.append(Group(100 + th, fr, mf, tags=[('dma', 36 + 2 * th), ('dma', 37 + 2 * th)]))
        run_groups(pg, {102: [lambda: poll_issue(V_FL2, V_FP)]})
        stamp('proj done')
        poll_check(V_FL2, V_FP, 1, issued=True)
        stamp('partials ready')
        srcs = [s for s in range(4) if s != g]
        nsb = 1 if OPT['pbf16'] else 2
        for i in range(3):
            E('s_add_u32 s%d, s%d, %d' % (S_SO, S_PB, (3 * g + i) * 8192))
            E('s_add_u32 s%d, s%d, %d' % (S_SO2, S_PB, (3 * g + i) * 8192 + 4096))
            for sb in range(nsb):
                for q, s in enumerate(srcs):
                    E('buffer_load_dwordx4 %s, v%d, %s, s%d offen offset:%d sc1' % (V(PR + ((i * nsb + sb) * 3 + q) * 4, 4), V_L16, srd(S_WS), S_SO2 if s >= 2 else S_SO, (s & 1) * 2048 + sb * 1024))
        for i in range(3):
            for sb in range(2):
                a = acc2(3 * g + i, sb)
                for q in range(3):
                    if OPT['pbf16']:
                        p = PR + (i * 3 + q) * 4 + sb * 2
                        for h in range(2):
                            E('v_lshlrev_b32 v%d, 16, v%d' % (V_T + 4, p + h))
                            E('v_and_b32 v%d, 0xffff0000, v%d' % (V_T + 5, p + h))
                            E('v_add_f32 v%d, v%d, v%d' % (a + 2 * h, a + 2 * h, V_T + 4))
                            E('v_add_f32 v%d, v%d, v%d' % (a + 2 * h + 1, a + 2 * h + 1, V_T + 5))
                    else:
                        p = PR + ((i * 2 + sb) * 3 + q) * 4
                        for r in range(4):
                            E('v_add_f32 v%d, v%d, v%d' % (a + r, a + r, p + r))
                E('v_cvt_pk_bf16_f32 v%d, v%d, v%d' % (a, a, a + 1))
                E('v_cvt_pk_bf16_f32 v%d, v%d, v%d' % (a + 1, a + 2, a + 3))
                E('buffer_store_dwordx2 %s, v%d, %s, s%d offen offset:%d' % (V(a, 2), xo, srd(S_OUT), S_OB if sb else S_C2, 32 * i))
        if g == 0:
            skip = newlabel('noep')
            E('s_or_b32 s%d, s%d, s%d' % (S_T0, S_M, S_WAVE))
            E('s_cmp_lg_u32 s%d, 0' % S_T0)
            E('s_cbranch_scc1 %s' % skip)
            E('s_lshl_b32 s%d, s%d, 7' % (S_T0, S_RT))
            E('s_add_u32 s%d, s%d, 0x%x' % (S_T0, S_T0, WS_E))
            set_flag(S_T0, 16, V_T)
            E.label(skip)
        stamp('end')
        E('s_endpgm')

from attn import attention

def main():
    hdr = open('cdna_kernels/%s.s.ref' % NAME).read().split('\n')
    head = [l for l in hdr if l.startswith(';') and '@launch' not in l and 'Override' not in l and 'grid=ceil' not in l]
    out = head + ['; @launch grid=(256,1,1) block=(256,1,1) lds=%d' % LDS_BYTES,
                  '.amdgcn_target "amdgcn-amd-amdhsa--gfx950"', '.text', '.globl %s_kernel' % NAME, '.p2align 8',
                  '.type %s_kernel,@function' % NAME, '%s_kernel:' % NAME]
    prologue()
    E('s_cmp_eq_u32 s%d, 3' % S_M)
    E('s_cbranch_scc1 L_attn')
    snap = E.snapshot()
    sn = stamp_n[0]
    mlp()
    E.raw('\n'.join(cold)); cold.clear()
    E.restore(snap)
    stamp_n[0] = sn
    E.label('L_attn')
    attention(sys.modules[__name__])
    E.raw('\n'.join(cold)); cold.clear()
    E.label('L_exit')
    E.raw('    s_endpgm')
    out.append(E.text())
    out += ['.section .rodata,"a"', '.p2align 6', '.amdhsa_kernel %s_kernel' % NAME,
            '  .amdhsa_next_free_vgpr 512', '  .amdhsa_next_free_sgpr 102', '  .amdhsa_accum_offset 256',
            '  .amdhsa_group_segment_fixed_size 0', '  .amdhsa_kernarg_size 88', '  .amdhsa_user_sgpr_count 2',
            '  .amdhsa_user_sgpr_kernarg_segment_ptr 1', '  .amdhsa_system_sgpr_workgroup_id_x 1',
            '  .amdhsa_float_denorm_mode_32 3',
            '.end_amdhsa_kernel', '']
    open(sys.argv[1], 'w').write('\n'.join(out))
    print('instructions %d nops %d waits %d' % (E.count, E.nnop, E.nwait))

if __name__ == '__main__':
    main()
```

```python
from emit import Ins

def attention(G):
    class _E:
        def __call__(self, *x, **k):
            return G.E(*x, **k)
        def __getattr__(self, n):
            return getattr(G.E, n)
    E = _E()
    V, A, srd, xn, MF = G.V, G.A, G.srd, G.xn, G.MF
    globals().update({k: getattr(G, k) for k in dir(G) if k.isupper() or k.startswith('S_') or k.startswith('V_')})
    D = 3
    L = V_LANE
    su = ['s_mov_b32 s%d, s%d' % (S_DBG, S_PTR + 18), 's_and_b32 s%d, s%d, 0xffff' % (S_DBG + 1, S_PTR + 19),
          's_mov_b32 s%d, 256' % (S_DBG + 2), 's_mov_b32 s%d, 0x20000' % (S_DBG + 3),
          's_lshl_b32 s%d, s%d, 2' % (S_C2, S_G),
          'v_mov_b32 v%d, s%d' % (V_FLG, S_C2),
          's_lshl_b32 s%d, s%d, 6' % (S_T0, S_G),
          's_add_u32 s%d, s%d, s%d' % (S_T0, S_T0, S_ROW0),
          's_mul_i32 s%d, s%d, 10240' % (S_PB, S_T0),
          's_add_u32 s%d, s%d, 0x%x' % (S_PB, S_PB, WS_KP),
          's_min_u32 s%d, s%d, 49' % (S_T0, S_ROW0),
          's_and_b32 s%d, s%d, 1' % (S_H0, S_T0),
          's_lshr_b32 s%d, s%d, 1' % (S_H0 + 1, S_T0),
          's_add_u32 s%d, s%d, 1' % (S_T0, S_H0 + 1),
          's_mul_i32 s%d, s%d, 43' % (S_H0 + 2, S_T0),
          's_lshr_b32 s%d, s%d, 7' % (S_H0 + 2, S_H0 + 2),
          's_mul_i32 s%d, s%d, 3' % (S_T1, S_H0 + 2),
          's_sub_u32 s%d, s%d, s%d' % (S_HOWN, S_T0, S_T1),
          's_lshr_b32 s%d, s%d, 1' % (S_T0, S_H0 + 2),
          's_mul_i32 s%d, s%d, 10240' % (S_T0, S_T0),
          's_and_b32 s%d, s%d, 1' % (S_T1, S_H0 + 2),
          's_mul_i32 s%d, s%d, 3' % (S_T2, S_T1),
          's_add_u32 s%d, s%d, s%d' % (S_T2, S_T2, S_HOWN),
          's_lshl_b32 s%d, s%d, 10' % (S_T2, S_T2),
          's_add_u32 s%d, s%d, s%d' % (S_SA, S_T0, S_T2),
          's_lshl_b32 s%d, s%d, 10' % (S_T1, S_T1),
          's_add_u32 s%d, s%d, s%d' % (S_SB, S_T0, S_T1),
          's_add_u32 s%d, s%d, %d' % (S_SB, S_SB, 6144),
          's_mul_i32 s%d, s%d, 10240' % (S_T0, S_HOWN),
          's_add_u32 s%d, s%d, 8192' % (S_T0, S_T0),
          lambda: (E('s_cmp_eq_u32 s%d, 8' % (S_H0 + 2)),
                   E('s_cselect_b32 s%d, s%d, s%d' % (S_SA, S_T0, S_SA)),
                   E('s_cselect_b32 s%d, %d, s%d' % (S_SB, 2 * 10240 + 9216, S_SB))),
          's_mul_i32 s%d, s%d, %d' % (S_T0, S_G, 64 * 10240),
          's_lshl_b32 s%d, s%d, 9' % (S_T1, S_H0),
          's_add_u32 s%d, s%d, s%d' % (S_T0, S_T0, S_T1),
          's_add_u32 s%d, s%d, 0x%x' % (S_T0, S_T0, WS_KP),
          's_add_u32 s%d, s%d, s%d' % (S_SA, S_SA, S_T0),
          's_add_u32 s%d, s%d, s%d' % (S_SB, S_SB, S_T0),
          's_lshl_b32 s%d, s%d, 15' % (S_BBASE, S_G),
          's_add_u32 s%d, s%d, 0x%x' % (S_BBASE, S_BBASE, WS_KF),
          's_lshr_b32 s%d, s%d, 1' % (S_T0, S_ROW0),
          's_lshl_b32 s%d, s%d, 10' % (S_OBASE, S_T0),
          's_and_b32 s%d, s%d, 1' % (S_T0, S_ROW0),
          's_lshl_b32 s%d, s%d, 8' % (S_T0, S_T0),
          's_add_u32 s%d, s%d, s%d' % (S_OBASE, S_OBASE, S_T0),
          's_add_u32 s%d, s%d, s%d' % (S_OBASE, S_OBASE, S_BBASE),
          'v_lshlrev_b32 v%d, 3, v%d' % (V_BIAS, L),
          'v_and_b32 v%d, 31, v%d' % (V_DB, L),
          'v_lshlrev_b32 v%d, 3, v%d' % (V_DB, V_DB),
          'v_lshrrev_b32 v%d, 5, v%d' % (V_DB + 1, L),
          'v_lshl_add_u32 v%d, v%d, 9, v%d' % (V_DB, V_DB + 1, V_DB),
          's_sub_u32 s%d, s%d, s%d' % (S_T0, S_SB, S_SA),
          'v_mul_lo_u32 v%d, v%d, s%d' % (V_DB + 1, V_DB + 1, S_T0),
          'v_and_b32 v%d, 0x1f0, v%d' % (V_T + 5, V_L16),
          'v_add_u32 v%d, v%d, v%d' % (V_DB + 1, V_DB + 1, V_T + 5),
          ]
    l8 = V_BIAS
    V_RO, V_RI = V_DB, V_DB + 1
    T = 248
    poison = ['v_mov_b32 v%d, -1' % (T + 4 + i) for i in range(4)]
    poison += ['s_add_u32 s%d, s%d, 4096' % (S_T0, S_PB), 's_add_u32 s%d, s%d, 8192' % (S_T1, S_PB)]
    for b in range(10):
        poison.append(Ins('buffer_store_dwordx4 %s, v%d, %s, s%d offen offset:%d sc1' % (V(T + 4, 4), V_L16, srd(S_WS), (S_PB, S_T0, S_T1)[b >> 2], (b & 3) * 1024), tag='poison'))
    poison.append(Ins('buffer_store_dwordx2 %s, v%d, %s, s%d offen sc1' % (V(T + 4, 2), V_RO, srd(S_WS), S_OBASE), tag='poison'))

    def retry(body_lines, check_lines):
        for l in check_lines:
            E(l)
        slow, back, loop = G.newlabel('slow'), G.newlabel('back'), G.newlabel('spin')
        E('s_cmp_lg_u64 vcc, 0')
        E('s_cbranch_scc1 %s' % slow)
        E.label(back)
        c = [slow + ':', '    s_mov_b32 s%d, %d' % (S_CNT, G.OPT['spin']), loop + ':']
        c += ['    ' + l for l in body_lines + ['s_nop 1'] + check_lines]
        c += ['    s_nop 1', '    s_cmp_lg_u64 vcc, 0', '    s_cbranch_scc0 %s' % back,
              '    s_sub_u32 s%d, s%d, 1' % (S_CNT, S_CNT), '    s_cmp_lg_u32 s%d, 0' % S_CNT,
              '    s_cbranch_scc1 %s' % loop, '    s_branch %s' % back]
        G.cold.extend(c)

    def stage_dma(t):
        mi, st = divmod(t, 9)
        cb = (0, 1152, -1152)[mi]
        return G.dma_ops(t, t % 6, S_WA, V_DA, S_ABASE, [(64 * st * 3456 + cb + 128 * p) & 0xffffffff for p in range(3)])

    def one_lane_add(off):
        skip = G.newlabel('cnt')
        E('s_cmp_lg_u32 s%d, 0' % S_WAVE)
        E('s_cbranch_scc1 %s' % skip)
        E('v_mov_b32 v%d, 1' % V_T)
        E('s_mov_b64 exec, 1')
        E('buffer_atomic_add v%d, off, %s, s%d offset:%d sc1' % (V_T, srd(S_DBG), S_C2, off))
        E.vm.pop()
        E('s_mov_b64 exec, -1')
        E.label(skip)

    def acc(i, sb):
        return ACC + (i * 2 + sb) * 4
    groups = []
    for t in range(27):
        mi, st = divmod(t, 9)
        for i in range(9):
            fr = [[G.lds_rd(2 * kl + j, t % 6, i >> 2, i & 3) for j in range(2)] for kl in range(2)]
            def mf(w0, w1, mi=mi, st=st, i=i):
                o = []
                for sb in range(2):
                    a = V(acc(i, sb), 4)
                    for kl, w in enumerate((w0, w1)):
                        x = V(xn(2 * st + kl, sb), 4)
                        c = a if (st or kl) else '0'
                        o.append(MF % ((a, x, w, c) if mi < 2 else (a, w, x, c)))
                return o
            groups.append(G.Group(t, fr, mf))

    PK = 48
    def phi4(a):
        for r in range(4):
            E('v_mul_f32 v%d, 0x3fb8aa3b, v%d' % (T + r, a + r))
        for r in range(4):
            E('v_exp_f32 v%d, v%d clamp' % (T + r, T + r))
        for r in range(4):
            E('v_max_f32 v%d, 0x358637bd, v%d' % (a + r, a + r))
        for r in range(4):
            E('v_add_f32 v%d, v%d, v%d' % (a + r, a + r, T + r))

    def k_epi():
        G.stamp('k done')
        for i in range(9):
            for sb in range(2):
                a = acc(i, sb)
                phi4(a)
                E('v_cvt_pk_bf16_f32 v%d, v%d, v%d' % (T + 4, a, a + 1))
                E('v_cvt_pk_bf16_f32 v%d, v%d, v%d' % (T + 5, a + 2, a + 3))
                E('v_accvgpr_write_b32 a%d, v%d' % (PK + i * 4 + sb * 2, T + 4))
                E('v_accvgpr_write_b32 a%d, v%d' % (PK + i * 4 + sb * 2 + 1, T + 5))
        G.stamp('k epi done')

    XOFF = 3 * SLOT
    wa, ra, rb, rc = V_T + 6, V_T + 7, V_T + 8, V_T + 9
    ones = T
    F = 88
    RA = 216
    pk_wr = ['ds_write_b128 v%d, %s offset:%d' % (wa, A(PK + 4 * i, 4), XOFF + i * 1024) for i in range(9)]
    v_pre = ['v_add_u32 v%d, s%d, v%d' % (wa, S_LDSW, V_L16),
             's_lshl_b32 s%d, s%d, 11' % (S_T0, S_WAVE),
             'v_add_u32 v%d, s%d, v%d' % (ra, S_T0, V_L16),
             's_max_u32 s%d, s%d, 1024' % (S_T1, S_T0),
             's_sub_u32 s%d, s%d, 1024' % (S_T1, S_T1),
             'v_add_u32 v%d, s%d, v%d' % (rb, S_T1, V_L16),
             's_min_u32 s%d, s%d, 1024' % (S_T1, S_T0),
             'v_add_u32 v%d, s%d, v%d' % (rc, S_T1, V_L16)]
    v_pre += ['v_mov_b32 v%d, 0x3f803f80' % (ones + i) for i in range(4)]
    def v_epi():
        G.stamp('v done')
        for i in range(9):
            if i < 3:
                E(pk_wr[6 + i])
            if i == 3:
                E('s_barrier')
            a, b = acc(i, 0), acc(i, 1)
            E('v_cvt_pk_bf16_f32 v%d, v%d, v%d' % (a, a, a + 1))
            E('v_cvt_pk_bf16_f32 v%d, v%d, v%d' % (a + 1, a + 2, a + 3))
            E('v_cvt_pk_bf16_f32 v%d, v%d, v%d' % (a + 2, b, b + 1))
            E('v_cvt_pk_bf16_f32 v%d, v%d, v%d' % (a + 3, b + 2, b + 3))
            E('ds_write_b128 v%d, %s offset:%d' % (wa, V(acc(i, 0), 4), XOFF + (9 + i) * 1024))
        E('v_mov_b32 v%d, v%d' % (wa, V_L16))
        E.wait(lg=0)
        E('s_barrier')
        for u in range(4):
            f = F + u * 32
            offs = [(ra, 0), (ra, 1), (rb, 9), (ra, 9), (ra, 10), (ra, 11), (wa, 8), (rc, 16)]
            for q, (ad, off) in enumerate(offs):
                E('ds_read_b128 %s, v%d offset:%d' % (A(f + 4 * q, 4), ad, XOFF + off * 1024))
            if u < 3:
                for r in (ra, rb, rc, wa):
                    E('v_add_u32 v%d, %d, v%d' % (r, REG, r))
        for op in kv_mm[:20]:
            E(op)
        E.wait(lg=0)
        G.stamp('kv exch')
    kv_mm = []
    for u in range(4):
        f = F + u * 32
        pairs = [(0, 2), (0, 3), (0, 4), (1, 3), (1, 4), (1, 5), (0, None), (1, None), (6, 7), (6, None)]
        for b, (p, e) in enumerate(pairs):
            kv_mm.append(MF % (A(RA + 4 * b, 4), A(f + 4 * p, 4), A(f + 4 * e, 4) if e is not None else V(ones, 4), A(RA + 4 * b, 4) if u else '0'))
    kv_st = ['s_add_u32 s%d, s%d, 4096' % (S_T0, S_PB), 's_add_u32 s%d, s%d, 8192' % (S_T1, S_PB)]
    for b in range(10):
        kv_st.append(Ins('buffer_store_dwordx4 %s, v%d, %s, s%d offen offset:%d sc1' % (A(RA + 4 * b, 4), V_L16, srd(S_WS), (S_PB, S_T0, S_T1)[b >> 2], (b & 3) * 1024), tag='kvp'))

    RK = XN
    red_ld = []
    for rt in range(16):
        red_ld.append('s_add_u32 s%d, s%d, %d' % (S_T0, S_SA, rt * 40960))
        red_ld.append('buffer_load_dwordx4 %s, v%d, %s, s%d offen sc1' % (V(RK + 4 * rt, 4), V_RI, srd(S_WS), S_T0))
    hd, he = V_T + 1, V_T + 5
    red_pre = [
        's_lshl_b32 s%d, s%d, 4' % (S_T2, S_H0 + 2),
        's_lshl_b32 s%d, s%d, 3' % (S_T3, S_H0),
        's_add_u32 s%d, s%d, s%d' % (S_T3, S_T3, S_T2),
        'v_bfe_u32 v%d, v%d, 4, 1' % (he, L),
        'v_lshlrev_b32 v%d, 2, v%d' % (he, he),
        'v_add_u32 v%d, s%d, v%d' % (he, S_T3, he)]
    for r in range(4):
        red_pre += ['v_add_u32 v%d, %d, v%d' % (hd + r, r, he),
                    'v_mul_u32_u24 v%d, 3641, v%d' % (hd + r, hd + r),
                    'v_lshrrev_b32 v%d, 16, v%d' % (hd + r, hd + r)]
    red_pre += [
        's_lshl_b32 s%d, s%d, 4' % (S_T3, S_HOWN),
        's_add_u32 s%d, s%d, s%d' % (S_T3, S_T3, S_T2),
        's_sub_u32 s%d, s%d, 16' % (S_T3, S_T3),
        'v_and_b32 v%d, 15, v%d' % (he, L),
        'v_add_u32 v%d, s%d, v%d' % (he, S_T3, he),
        'v_mul_u32_u24 v%d, 3641, v%d' % (he, he),
        'v_lshrrev_b32 v%d, 16, v%d' % (he, he)]
    red_sum = ['v_add_f32 v%d, v%d, v%d' % (RK + r, RK + r, RK + 4 * rt + r) for rt in range(1, 16) for r in range(4)]
    def red_fin():
        chk = ['v_add_f32 v%d, v%d, v%d' % (T, RK, RK + 1), 'v_add_f32 v%d, v%d, v%d' % (T + 1, RK + 2, RK + 3),
               'v_cmp_u_f32 vcc, v%d, v%d' % (T, T + 1)]
        retry(red_ld + ['s_waitcnt vmcnt(0)'] + red_sum, chk)
        for r in range(4):
            E('v_cmp_eq_u32 vcc, v%d, v%d' % (hd + r, he))
            E('v_cndmask_b32 v%d, 0, v%d, vcc' % (RK + r, RK + r))
        E('v_cvt_pk_bf16_f32 v%d, v%d, v%d' % (RK, RK, RK + 1))
        E('v_cvt_pk_bf16_f32 v%d, v%d, v%d' % (RK + 1, RK + 2, RK + 3))
        E('buffer_store_dwordx2 %s, v%d, %s, s%d offen sc1' % (V(RK, 2), V_RO, srd(S_WS), S_OBASE), tag='kf')

    dm = {t: (stage_dma(t + D) if t + D < 27 else []) for t in range(27)}
    dm[19] = dm[18] + dm[19]; dm[18] = []
    ex = {t: [] for t in range(27)}
    early = []
    if G.OPT['prefetch']:
        early += ['s_lshl_b32 s%d, s%d, 8' % (S_T1, S_G)] + G.l2_prefetch(S_WA, S_T1, V_DA, 3456, 576, [0, 128, 256], 200, S_T0)
    early += su + poison
    per = (len(early) + 7) // 8
    for t in range(8):
        ex[t] = early[per * t:per * (t + 1)]
    ex[10] = [lambda: E.wait_tag('poison')]
    ex[11] = [lambda: one_lane_add(0)] + red_pre[:12]
    ex[12] = red_pre[12:]
    ex[14] = v_pre
    ex[16] = [lambda: G.poll_issue(V_FL2, V_FLG, S_DBG)]
    ex[17] = pk_wr[:6]
    ex[18] = kv_mm[20:] + kv_st
    R0 = G.OPT['red0']
    ex[R0 - 1].append(lambda: G.poll_check(V_FL2, V_FLG, 0, srdn=S_DBG, mode='count', target=16, issued=True))
    ex[R0] += red_ld[:16]
    ex[R0 + 1] += red_ld[16:]
    ex[R0 + 2] += red_sum[:16]
    ex[R0 + 3] += red_sum[16:] + [red_fin]
    side = {t: (G.merge(dm[t], ex[t]) if dm[t] and ex[t] else dm[t] + ex[t]) for t in range(27)}
    inter = {81: k_epi, 162: v_epi}
    G.run_groups(groups, side, inter)

    G.stamp('q done')
    PQV = XN + 64
    def q_phi(i):
        for sb in range(2):
            a = acc(i, sb)
            phi4(a)
            d = PQV + ((i >> 1) * 2 + sb) * 4 + (i & 1) * 2
            E('v_cvt_pk_bf16_f32 v%d, v%d, v%d' % (d, a, a + 1))
            E('v_cvt_pk_bf16_f32 v%d, v%d, v%d' % (d + 1, a + 2, a + 3))
    FB = 136
    K4 = XN
    E('s_mul_i32 s%d, s%d, %d' % (S_T0, S_WAVE, 6 * 1024))
    E('s_max_u32 s%d, s%d, 1024' % (S_T3, S_T0))
    E('s_add_u32 s%d, s%d, s%d' % (S_T0, S_T0, S_BBASE))
    E('s_add_u32 s%d, s%d, s%d' % (S_T3, S_T3, S_BBASE))
    E('s_sub_u32 s%d, s%d, 1024' % (S_T0, S_T0))
    E('s_sub_u32 s%d, s%d, 1024' % (S_T3, S_T3))
    E('s_add_u32 s%d, s%d, 3072' % (S_T1, S_T0))
    E('s_add_u32 s%d, s%d, %d' % (S_T2, S_BBASE, 23 * 1024))
    kf_ld, kf_regs, kf_zero = [], [], []
    for e in range(4):
        for h in range(2):
            for z in range(2):
                d = FB + (e * 2 + z) * 4 + h * 2
                if 0 <= e - h <= 2:
                    kf_ld.append('buffer_load_dwordx2 %s, v%d, %s, s%d offen offset:%d sc1' % (V(d, 2), l8, srd(S_WS), S_T1 if h else (S_T0 if e else S_T3), (e - h) * 1024 + z * 512))
                    kf_regs += [d, d + 1]
                else:
                    kf_zero += [d, d + 1]
    for e in range(2):
        for z in range(2):
            d = K4 + (e * 2 + z) * 4
            kf_ld.append('buffer_load_dwordx2 %s, v%d, %s, s%d offen offset:%d sc1' % (V(d, 2), l8, srd(S_WS), S_T2, e * 1024 + z * 512))
            kf_regs += [d, d + 1]
            kf_zero += [d + 2, d + 3]
    KQ = G.OPT['kfat']
    for i in range(KQ):
        q_phi(i)
    rest = G.capture_plain(lambda: [q_phi(i) for i in range(KQ, min(KQ + 2, 9))])
    for op in G.merge(rest, kf_ld):
        E(op)
    for i in range(KQ + 2, 9):
        q_phi(i)
    for sb in range(2):
        kf_zero += [PQV + (8 + sb) * 4 + 2, PQV + (8 + sb) * 4 + 3]
    for d in kf_zero:
        E('v_mov_b32 v%d, 0' % d)
    G.stamp('q epi done')
    chk = ['v_max_u32 v%d, v%d, v%d' % (T, kf_regs[0], kf_regs[1])]
    for i in range(2, len(kf_regs), 2):
        chk.append('v_max3_u32 v%d, v%d, v%d, v%d' % (T, T, kf_regs[i], kf_regs[i + 1]))
    chk.append('v_cmp_eq_u32 vcc, -1, v%d' % T)
    retry(kf_ld + ['s_waitcnt vmcnt(0)'], chk)
    G.stamp('kv ready')
    E('s_barrier')
    wa = V_T + 1
    E('v_add_u32 v%d, s%d, v%d' % (wa, S_LDSW, V_L16))
    E('v_add_u32 v%d, %d, v%d' % (wa + 1, 2 * REG, V_L16))
    for q in range(8):
        E('ds_write_b128 v%d, %s offset:%d' % (wa, V(FB + 4 * q, 4), q * 1024))
    E.wait(lg=0)
    E('s_barrier')
    AF = 72
    for w in range(4):
        for q in range(8):
            if w == 0 and q < 2:
                continue
            E('ds_read_b128 %s, v%d offset:%d' % (A(AF + (w * 8 + q) * 4, 4), V_L16 if w < 2 else wa + 1, (w & 1) * REG + q * 1024))
    E('s_mul_i32 s%d, s%d, %d' % (S_OB, S_ROW0, 36 * 1024))
    E('s_mul_i32 s%d, s%d, 9' % (S_T0, S_G))
    E('s_lshr_b32 s%d, s%d, 1' % (S_T0, S_T0))
    E('s_lshl_b32 s%d, s%d, 11' % (S_T0, S_T0))
    E('s_add_u32 s%d, s%d, s%d' % (S_OB, S_OB, S_T0))
    E('s_add_u32 s%d, s%d, 0x%x' % (S_OB, S_OB, WS_O))
    E('s_add_u32 s%d, s%d, 4096' % (S_T0, S_OB))
    E('s_add_u32 s%d, s%d, 8192' % (S_T1, S_OB))
    E('s_lshl_b32 s%d, s%d, 2' % (S_T2, S_ROW0))
    E('s_add_u32 s%d, s%d, s%d' % (S_T2, S_T2, S_G))
    E('s_lshl_b32 s%d, s%d, 7' % (S_FL, S_T2))
    E('s_add_u32 s%d, s%d, %d' % (S_FL, S_FL, FL_O * 128))
    def afr(eb, i, z):
        if i == 4:
            return V(K4 + ((eb - 7) * 2 + z) * 4, 4)
        return A(AF + (i * 8 + (eb - 2 * i + 1) * 2 + z) * 4, 4)
    DEN = 48
    OB = 136
    def den(eb, sb):
        return DEN + ((((eb + 1) % 9) * 2 + sb) % 12) * 4
    def mm(eb):
        ks = [i for i in ((eb - 1) >> 1, (eb + 1) >> 1) if 0 <= i <= 4]
        o = []
        for sb in range(2):
            for z, dst in ((1, den(eb, sb)), (0, acc(eb, sb))):
                for n, i in enumerate(ks):
                    o.append(MF % (V(dst, 4), afr(eb, i, z), V(PQV + (i * 2 + sb) * 4, 4), V(dst, 4) if n else (V(T, 4) if z else '0')))
        return o
    def fin(eb):
        o = []
        for sb in range(2):
            a, d = acc(eb, sb), den(eb, sb)
            o += ['v_rcp_f32 v%d, v%d' % (d + r, d + r) for r in range(4)]
            o += ['v_mul_f32 v%d, v%d, v%d' % (a + r, a + r, d + r) for r in range(4)]
            o.append('v_cvt_pk_bf16_f32 v%d, v%d, v%d' % (OB + sb * 20 + eb * 2, a, a + 1))
            o.append('v_cvt_pk_bf16_f32 v%d, v%d, v%d' % (OB + sb * 20 + eb * 2 + 1, a + 2, a + 3))
        return o
    for r in range(4):
        E('v_mov_b32 v%d, 0x358637bd' % (T + r))
    G.stamp('frag exch')
    odd = G.newlabel('odd')
    E('s_bitcmp1_b32 s%d, 0' % S_G)
    E('s_cbranch_scc1 %s' % odd)
    snap = E.snapshot()
    sn = G.stamp_n[0]
    for par in range(2):
        E.restore(snap)
        G.stamp_n[0] = sn
        if par:
            E.label(odd)
        def ost(k):
            sreg = (S_OB, S_T0, S_T1)[k >> 1]
            o = []
            for sb in range(2):
                off = ((k & 1) * 2 + sb) * 1024
                lo = 2 * k - par
                if lo >= 0 and lo + 1 <= 8:
                    o.append('buffer_store_dwordx4 %s, v%d, %s, s%d offen offset:%d sc1' % (V(OB + sb * 20 + lo * 2, 4), V_L16, srd(S_WS), sreg, off))
                elif lo < 0:
                    o.append('buffer_store_dwordx2 %s, v%d, %s, s%d offen offset:%d sc1' % (V(OB + sb * 20, 2), V_L16, srd(S_WS), sreg, off + 8))
                else:
                    o.append('buffer_store_dwordx2 %s, v%d, %s, s%d offen offset:%d sc1' % (V(OB + sb * 20 + 16, 2), V_L16, srd(S_WS), sreg, off))
            return o
        order = list(range(9)) if par else [8] + list(range(8))
        for op in mm(order[0]) + mm(order[1]):
            E(op)
        donek = set()
        fin_ = set()
        for n, eb in enumerate(order):
            for op in (G.merge(mm(order[n + 2]), fin(eb)) if n + 2 < 9 else fin(eb)):
                E(op)
            fin_.add(eb)
            for k in range(5):
                need_ = {x for x in (2 * k - par, 2 * k - par + 1) if 0 <= x <= 8}
                if k not in donek and need_ <= fin_:
                    donek.add(k)
                    for op in ost(k):
                        E(op)
        G.stamp('o math')
        E.wait(vm=0)
        G.set_flag(S_FL, 1, V_T)
        G.stamp('o published')
        E('s_endpgm')
```

```python
import sys
from emit import Emitter, Ins

NAME = 'parallel_sum__linear_attn_block__dense_activation_squared_relu__prompt'
OPT = dict(D=4, stamps=0, prefetch=1, spin=20000, nodma=0, nobar=0, noepi=0, noh=0, codepf=1, pbf16=1, plainld=0, pf16=1, pfearly=0, red0=22, kfat=3, oat=34, oper=3, wsplit=0, pf2=1)
for a in sys.argv[2:]:
    k, v = a.split('=')
    assert k in OPT, k
    OPT[k] = int(v)

REG = 37440
SLOT = 6144
XU = 1040
EXTRA = 4 * REG
LDS_BYTES = 163840
WS_FLAG = 0
WS_E = 0x80000
WS_KF = 0x100000
WS_KP = 0x140000
WS_O = 0x400000
WS_H = 0x800000
WS_P = 0x2000000
WS_STAMP = 0x6000000
FL_H = 0
FL_O = 1024
FL_P = 1280

S_X, S_WA, S_WB, S_WS, S_OUT, S_B1, S_B2, S_DBG = 8, 12, 16, 20, 24, 28, 32, 36
S_WO = 4
S_PTR = 40
S_WAVE, S_G, S_RT, S_M, S_E = 62, 63, 64, 65, 66
S_LDSW = 67
S_T0, S_T1, S_T2, S_T3 = 68, 69, 70, 71
S_SO = 72
S_ABASE = 73
S_BBASE = 74
S_H0 = 75
S_HOWN = 78
S_PB = 79
S_CNT = 80
S_ROW0 = 81
S_SO2 = 82
S_OBASE = 83
S_SA, S_SB = 84, 85
S_ST = 86
S_C1, S_C2 = 88, 89
S_FL = 90
S_OB = 91
S_STB = 92
S_FL2 = 93
S_C3 = 3

def srd(n):
    return 's[%d:%d]' % (n, n + 3)
def V(n, c=1):
    return 'v%d' % n if c == 1 else 'v[%d:%d]' % (n, n + c - 1)
def A(n, c=1):
    return 'a%d' % n if c == 1 else 'a[%d:%d]' % (n, n + c - 1)
MF = 'v_mfma_f32_16x16x32_bf16 %s, %s, %s, %s'

V_LANE = 1
V_WR = 2
V_DA, V_DB = 14, 16
V_L16 = 18
V_BIAS = 19
V_FLG = 20
V_FL2 = 21
V_T = 22
V_STMP = 0
XN = 32
ACC = 176
HT = 240
def xn(ks, sb):
    return XN + (ks * 2 + sb) * 4

E = Emitter()
cold = []
uid = [0]
def newlabel(p):
    uid[0] += 1
    return 'L_%s_%d' % (p, uid[0])

def mk_srd(dst, ptr, nbytes):
    E('s_mov_b32 s%d, s%d' % (dst, ptr))
    E('s_and_b32 s%d, s%d, 0xffff' % (dst + 1, ptr + 1))
    E('s_mov_b32 s%d, 0x%x' % (dst + 2, nbytes))
    E('s_mov_b32 s%d, 0x20000' % (dst + 3))

stamp_n = [0]
def stamp(name=''):
    if not OPT['stamps']:
        return
    i = stamp_n[0]
    stamp_n[0] += 1
    assert i < 32
    E.comment('stamp %d %s' % (i, name))
    E('s_memrealtime s[%d:%d]' % (S_ST, S_ST + 1))
    E('s_memtime s[94:95]')
    E.wait(lg=0)
    E('v_mov_b32 v%d, s%d' % (V_STMP, S_ST))
    E('buffer_store_dword v%d, off, %s, s%d offset:%d' % (V_STMP, srd(S_WS), S_STB, 4 * i))
    E('v_mov_b32 v%d, s94' % (V_STMP))
    E('buffer_store_dword v%d, off, %s, s%d offset:%d' % (V_STMP, srd(S_WS), S_STB, 128 + 4 * i))

def poll_issue(vtmp, voff, srdn=S_WS):
    E('buffer_load_dword v%d, v%d, %s, 0 offen sc1' % (vtmp, voff, srd(srdn)))

def poll_check(vtmp, voff, k, srdn=S_WS, mode='epoch', target=None, issued=False):
    ld = 'buffer_load_dword v%d, v%d, %s, 0 offen sc1' % (vtmp, voff, srd(srdn))
    def cmp_lines():
        if mode == 'epoch':
            return ['s_add_u32 s%d, s%d, %d' % (S_T3, S_E, k),
                    'v_subrev_u32 v%d, s%d, v%d' % (vtmp, S_T3, vtmp),
                    'v_cmp_gt_u32 vcc, 8, v%d' % vtmp]
        return ['v_cmp_le_u32 vcc, %d, v%d' % (target, vtmp)]
    if not issued:
        E(ld)
    for l in cmp_lines():
        E(l)
    slow, back = newlabel('slow'), newlabel('back')
    E('s_cmp_eq_u64 vcc, exec')
    E('s_cbranch_scc0 %s' % slow)
    E.label(back)
    loop = newlabel('spin')
    c = [slow + ':',
         '    s_mov_b32 s%d, %d' % (S_CNT, OPT['spin']),
         loop + ':',
         '    ' + ld,
         '    s_waitcnt vmcnt(0)']
    c += ['    ' + l for l in cmp_lines()]
    c += ['    s_nop 1',
          '    s_cmp_eq_u64 vcc, exec',
          '    s_cbranch_scc1 %s' % back,
          '    s_sleep 1',
          '    s_sub_u32 s%d, s%d, 1' % (S_CNT, S_CNT),
          '    s_cmp_lg_u32 s%d, 0' % S_CNT,
          '    s_cbranch_scc1 %s' % loop,
          '    s_branch %s' % back]
    cold.extend(c)

def set_flag(soff, k, vtmp):
    E('s_add_u32 s%d, s%d, %d' % (S_T3, S_E, k))
    E('v_mov_b32 v%d, s%d' % (vtmp, S_T3))
    E('buffer_store_dword v%d, off, %s, s%d sc1' % (vtmp, srd(S_WS), soff))

def lds_rd(region, slot, p, nb):
    off = region * REG + slot * SLOT + p * 2048
    win = off >> 16
    return V_WR + win * 4 + nb, off - (win << 16)

def dma_ops(stage, slot, srdn, vd, sbase, offs):
    ops = []
    if OPT['nodma'] and stage >= 6:
        return ops
    for p in range(3):
        ops.append(Ins('s_add_u32 m0, s%d, %d' % (S_LDSW, slot * SLOT + p * 2048)))
        ops.append(Ins('s_add_u32 s%d, s%d, %d' % (S_SO, sbase, offs[p])))
        ops.append(Ins('buffer_load_dwordx4 v%d, %s, s%d offen lds' % (vd, srd(srdn), S_SO), tag=('dma', stage)))
        ops.append(Ins('buffer_load_dwordx4 v%d, %s, s%d offen offset:1024 lds' % (vd + 1, srd(srdn), S_SO), tag=('dma', stage)))
    return ops

class Group:
    def __init__(self, stage, frags, mf, tags=None):
        self.stage, self.frags, self.mf = stage, frags, mf
        self.tags = tags or [('dma', stage)]

def do(op):
    if callable(op):
        op()
    else:
        E(op)

LEAD = 16
WRING = 48
def is_vmem(op):
    t = op.text if isinstance(op, Ins) else op
    return isinstance(t, str) and t.startswith(('buffer_', 'global_'))
def run_groups(groups, side, interlude=None, first=None, lo=0, hi=None):
    interlude = interlude or {}
    n = len(groups)
    hi = n if hi is None else hi
    def wreg(gi, f):
        return ((gi % 6) * 2 + f) * 4
    def read(i):
        gi, q = divmod(i, 4)
        f, j = divmod(q, 2)
        ad, imm = groups[gi].frags[f][j]
        return 'ds_read_b64_tr_b16 %s, v%d offset:%d' % (A(wreg(gi, f) + 2 * j, 2), ad, imm)
    def newstage(i):
        gi = i // 4
        return i % 4 == 0 and gi < n and (gi == 0 or groups[gi].stage != groups[gi - 1].stage) and groups[gi].tags != 'nobar'
    def barrier(i):
        for tg in groups[i // 4].tags:
            E.wait_tag(tg)
        if i == 0:
            E.wait(lg=0)
        if not OPT['nobar']:
            E('s_barrier')
    if lo == 0:
        for i in range(min(LEAD, 4 * n)):
            if newstage(i):
                barrier(i)
            if i == 0:
                for op in first or []:
                    do(op)
            E(read(i))
    gaps = {}
    for i in range(4 * n):
        busy = (i % 8 == 7) or newstage(i + LEAD) or newstage(i + LEAD + 1)
        if not busy:
            gaps.setdefault(groups[i // 4].stage, []).append(i)
    plan = {}
    for st, gl in gaps.items():
        sl = side.get(st, [])
        for k, op in enumerate(sl):
            plan.setdefault(gl[(k * len(gl)) // len(sl)], []).append(op)
    for gi in range(lo, hi):
        g = groups[gi]
        if gi in interlude:
            interlude[gi]()
        mf = g.mf(A(wreg(gi, 0), 4), A(wreg(gi, 1), 4))
        if gi % 2 == 0:
            E.touch(A(wreg(gi, 0), 16 if gi + 1 < n else 8))
        for q in range(4):
            i = gi * 4 + q
            E(mf[q])
            if newstage(i + LEAD + 1):
                if i + LEAD < 4 * n:
                    E(read(i + LEAD))
                for tg in groups[(i + LEAD + 1) // 4].tags:
                    E.wait_tag(tg)
                continue
            if newstage(i + LEAD):
                barrier(i + LEAD)
            if i + LEAD < 4 * n:
                E(read(i + LEAD))
            for op in plan.get(i, []):
                do(op)

def merge(*lists):
    items = []
    for li, l in enumerate(lists):
        for i, x in enumerate(l):
            items.append(((i + 0.5) / len(l), li, i, x))
    items.sort(key=lambda t: t[:3])
    return [t[3] for t in items]

def bf16r(dst, src):
    E('v_cvt_pk_bf16_f32 v%d, v%d, v%d' % (dst, src, src))
    E('v_lshlrev_b32 v%d, 16, v%d' % (dst, dst))

def l2_prefetch(srdn, sbase, vpat, stride, nrows, lines, adst, stmp, linemajor=False):
    nun = (nrows // 8) * len(lines)
    assert lines == [lines[0] + (lines[1] - lines[0]) * i for i in range(len(lines))] or len(lines) == 1
    nl = len(lines)
    step = lines[1] - lines[0] if nl > 1 else 0
    ops = []
    magic = (65536 + nl - 1) // nl
    hi_mul, lo_mul = 8 * stride - nl * step, step
    if linemajor:
        noct = nrows // 8
        magic = (65536 + noct - 1) // noct
        assert all((u * magic) >> 16 == u // noct for u in range(nun))
        hi_mul, lo_mul = (step - noct * 8 * stride) & 0xffffffff, 8 * stride
    t2 = S_SO2
    for i in range((nun + 63) // 64):
        ops += ['s_add_u32 s%d, s%d, %d' % (stmp, S_ROW0, 64 * i),
                's_min_u32 s%d, s%d, %d' % (stmp, stmp, nun - 1),
                's_mul_i32 s%d, s%d, %d' % (t2, stmp, magic),
                's_lshr_b32 s%d, s%d, 16' % (t2, t2),
                's_mul_i32 s%d, s%d, %d' % (t2, t2, hi_mul),
                's_mul_i32 s%d, s%d, %d' % (stmp, stmp, lo_mul),
                's_add_u32 s%d, s%d, s%d' % (stmp, stmp, t2),
                's_add_u32 s%d, s%d, s%d' % (stmp, stmp, sbase),
                'buffer_load_dwordx4 %s, v%d, %s, s%d offen offset:%d' % (A(adst + 4 * i, 4), vpat, srd(srdn), stmp, lines[0])]
    return ops

def early_prefetch():
    la, lj = newlabel('pfa'), newlabel('pfj')
    E('s_cmp_eq_u32 s%d, 3' % S_M)
    E('s_cbranch_scc1 %s' % la)
    snap = E.snapshot()
    def emit(ops):
        for op in ops:
            E(op)
    emit(l2_prefetch(S_WA, S_C1, V_DA, 9216, 576, [128 * i for i in range(6)], 216, S_T0, True))
    E('s_branch %s' % lj)
    E.restore(snap)
    E.label(la)
    E('s_lshl_b32 s%d, s%d, 8' % (S_T2, S_G))
    emit(l2_prefetch(S_WA, S_T2, V_DA, 3456, 576, [1152 + 128 * i for i in range(3)], 216, S_T0))
    emit(l2_prefetch(S_WA, S_T2, V_DA, 3456, 576, [2304 + 128 * i for i in range(3)], 232, S_T0))
    E.vm.pop()
    E.label(lj)

def prologue():
    E('s_cmp_ge_u32 s2, 256')
    E('s_cbranch_scc1 L_exit')
    if OPT['stamps']:
        E('s_memrealtime s[98:99]')
        E('s_memtime s[100:101]')
    E('s_load_dwordx2 s[40:41], s[0:1], 0')
    L = V_LANE
    if OPT['codepf']:
        E('s_getpc_b64 s[96:97]')
        E.label('L_pcref')
        E('s_lshr_b32 s%d, s2, 3' % S_T0)
        E('s_mul_i32 s%d, s%d, %d' % (S_T0, S_T0, 28 * 128))
        E('v_lshrrev_b32 v%d, 6, v0' % V_T)
        E('v_and_b32 v%d, 63, v0' % L)
        E('v_min_u32 v%d, 6, v%d' % (V_T + 2, L))
        E('v_mad_u32_u24 v%d, v%d, 7, v%d' % (V_T + 2, V_T, V_T + 2))
        E('v_lshlrev_b32 v%d, 7, v%d' % (V_T + 2, V_T + 2))
        E('v_add_u32 v%d, s%d, v%d' % (V_T + 2, S_T0, V_T + 2))
        E('v_min_u32 v%d, L_exit-L_pcref, v%d' % (V_T + 2, V_T + 2))
        E('global_load_dword a212, v%d, s[96:97]' % (V_T + 2))
    else:
        E('v_lshrrev_b32 v%d, 6, v0' % V_T)
        E('v_and_b32 v%d, 63, v0' % L)
    E('v_readfirstlane_b32 s%d, v%d' % (S_WAVE, V_T))
    E('s_lshr_b32 s%d, s2, 3' % S_T2)
    E('s_sub_u32 s%d, s%d, 8' % (S_T3, S_T2))
    E('s_mul_i32 s%d, s%d, 43' % (S_RT, S_T3))
    E('s_lshr_b32 s%d, s%d, 7' % (S_RT, S_RT))
    E('s_mul_i32 s%d, s%d, 3' % (S_M, S_RT))
    E('s_sub_u32 s%d, s%d, s%d' % (S_M, S_T3, S_M))
    E('s_cmp_lt_u32 s%d, 8' % S_T2)
    E('s_cselect_b32 s%d, s%d, s%d' % (S_RT, S_T2, S_RT))
    E('s_cselect_b32 s%d, 3, s%d' % (S_M, S_M))
    E('s_and_b32 s%d, s2, 4' % S_T0)
    E('s_lshl_b32 s%d, s%d, 1' % (S_T0, S_T0))
    E('s_add_u32 s%d, s%d, s%d' % (S_RT, S_RT, S_T0))
    t0, t1, t2, t3 = V_T, V_T + 1, V_T + 2, V_T + 3
    E('v_lshrrev_b32 v%d, 3, v%d' % (t0, L))
    E('v_and_b32 v%d, 6, v%d' % (t1, t0))
    E('v_and_b32 v%d, 7, v%d' % (t2, L))
    E('v_xor_b32 v%d, v%d, v%d' % (t1, t1, t2))
    E('v_lshlrev_b32 v%d, 4, v%d' % (t1, t1))
    E('v_mul_u32_u24 v%d, 1152, v%d' % (V_DB, t0))
    E('v_add_u32 v%d, v%d, v%d' % (V_DB, V_DB, t1))
    E('v_add_u32 v%d, %d, v%d' % (t3, 8 * 1152 - XU, V_DB))
    E('s_mul_i32 s%d, s%d, %d' % (S_LDSW, S_WAVE, REG))
    E('s_lshl_b32 s%d, s%d, 2' % (S_ROW0, S_RT))
    E('s_add_u32 s%d, s%d, s%d' % (S_ROW0, S_ROW0, S_WAVE))
    E('s_mul_i32 s%d, s%d, %d' % (S_T1, S_ROW0, 32 * 1152))
    E('s_lshl_b32 s%d, s%d, 1' % (S_H0, S_M))
    E('s_mov_b32 s%d, s%d' % (S_H0 + 1, S_H0))
    E('s_add_u32 s%d, s%d, %d' % (S_H0 + 2, S_LDSW, 18 * XU))
    E('s_add_u32 s%d, s%d, %d' % (S_HOWN, S_T1, 16 * 1152))
    E('s_mov_b32 s%d, 0x%x' % (S_X + 2, 2048 * 1152))
    E('s_mov_b32 s%d, 0x20000' % (S_X + 3))
    E.wait(lg=0)
    if OPT['stamps'] == 4:
        E('s_memtime s[94:95]')
        E.wait(lg=0)
        E('s_mov_b32 s101, s94')
    E('s_mov_b32 s%d, s40' % S_X)
    E('s_and_b32 s%d, s41, 0xffff' % (S_X + 1))
    XC = (S_H0, S_H0 + 1)
    def xdma(sb):
        c = XC[sb]
        return ['s_mul_i32 s%d, s%d, %d' % (S_T2, c, 2 * XU),
                's_lshl_b32 s%d, s%d, 7' % (S_SO, c),
                's_add_u32 m0, s%d, s%d' % (S_T2, S_LDSW if sb == 0 else S_H0 + 2),
                's_add_u32 s%d, s%d, s%d' % (S_SO, S_SO, S_T1 if sb == 0 else S_HOWN),
                Ins('buffer_load_dwordx4 v%d, %s, s%d offen lds' % (V_DB, srd(S_X), S_SO), tag=('x', sb)),
                lambda: [E('s_cmp_eq_u32 s%d, 8' % c), E('s_cselect_b32 s%d, -1, s%d' % (c, c))],
                Ins('buffer_load_dwordx4 v%d, %s, s%d offen offset:%d lds' % (t3, srd(S_X), S_SO, XU), tag=('x', sb)),
                's_add_u32 s%d, s%d, 1' % (c, c)]
    for n, sb in enumerate([0] * 5 + [1] * 3 + [0] * 4):
        for op in xdma(sb):
            do(op)
        if n == 0:
            E('s_load_dwordx16 s[40:55], s[0:1], 0')
            E('s_load_dwordx4 s[56:59], s[0:1], 64')
            E('s_load_dwordx2 s[60:61], s[0:1], 80')
    E('s_and_b32 s%d, s2, 3' % S_G)
    setup_ops = capture(setup_rest)
    x1 = [op for c in range(6) for op in xdma(1)]
    x1 = [o.replace('s%d' % S_T2, 's%d' % S_PB) if isinstance(o, str) else o for o in x1]
    E.wait(lg=0)
    if OPT['stamps'] == 4:
        E('s_memtime s[94:95]')
        E.wait(lg=0)
        E('s_mov_b32 s99, s94')
    for op in merge(setup_ops, x1):
        do(op)
    if OPT['prefetch'] and OPT['pfearly']:
        early_prefetch()
    if OPT['stamps']:
        E('s_lshl_b32 s%d, s2, 2' % S_STB)
        E('s_add_u32 s%d, s%d, s%d' % (S_STB, S_STB, S_WAVE))
        E('s_lshl_b32 s%d, s%d, 8' % (S_STB, S_STB))
        E('s_add_u32 s%d, s%d, 0x%x' % (S_STB, S_STB, WS_STAMP))
        stamp_n[0] = 1
        E('v_mov_b32 v%d, s98' % (V_STMP))
        E('buffer_store_dword v%d, off, %s, s%d' % (V_STMP, srd(S_WS), S_STB))
        E('v_mov_b32 v%d, s100' % (V_STMP))
        E('buffer_store_dword v%d, off, %s, s%d offset:128' % (V_STMP, srd(S_WS), S_STB))
    if OPT['stamps'] == 4:
        for nm, r in (('kernarg', 101), ('sb0 issued', 99)):
            E.comment('stamp %d %s' % (stamp_n[0], nm))
            E('v_mov_b32 v%d, s%d' % (V_STMP, r))
            E('buffer_store_dword v%d, off, %s, s%d offset:%d' % (V_STMP, srd(S_WS), S_STB, 128 + 4 * stamp_n[0]))
            E('v_mov_b32 v%d, s98' % (V_STMP))
            E('buffer_store_dword v%d, off, %s, s%d offset:%d' % (V_STMP, srd(S_WS), S_STB, 4 * stamp_n[0]))
            stamp_n[0] += 1
    stamp('x issued')
    layernorm()

def capture_plain(fn):
    global E
    real = E
    ops = []
    class Rec:
        def __call__(self, t, tag=None):
            ops.append(Ins(t, tag) if tag else t)
    E = Rec()
    fn()
    E = real
    return ops

def capture(fn):
    global E
    real = E
    ops = []
    class Rec:
        def __call__(self, t, tag=None):
            ops.append(Ins(t, tag) if tag else t)
    E = Rec()
    fn()
    E = real
    out, i = [], 0
    while i < len(ops):
        o = ops[i]
        if isinstance(o, str) and o.startswith('s_cmp'):
            j = max(k for k in range(i, len(ops)) if isinstance(ops[k], str) and ops[k].startswith('s_cselect') and not any(isinstance(x, str) and x.startswith('s_cmp') for x in ops[i + 1:k]))
            blk = ops[i:j + 1]
            out.append(lambda blk=blk: [E(x) for x in blk])
            i = j + 1
        else:
            out.append(o)
            i += 1
    return out

XAD = ACC + 40
ONES = ACC + 48
ONEF = ACC + 46
V_BLD = ACC + 44
V_BAD = ACC + 45
SEL = ACC + 52
XRA = V_T + 7
XRES = 244
LNT = ACC + 60
S_DM = 32
def setup_rest():
    L = V_LANE
    t0, t1 = V_T, V_T + 1
    mk_srd(S_WS, S_PTR + 20, 0x10000000)
    mk_srd(S_B1, S_PTR + 10, 4608 * 2)
    E('s_lshl_b32 s%d, s%d, 7' % (S_T0, S_RT))
    E('s_add_u32 s%d, s%d, 0x%x' % (S_T0, S_T0, WS_E))
    E('buffer_load_dword v%d, off, %s, s%d sc1' % (V_FL2, srd(S_WS), S_T0))
    E('s_mul_i32 s%d, s%d, 3' % (S_T0, S_G))
    E('s_add_u32 s%d, s%d, s%d' % (S_T0, S_T0, S_M))
    E('s_mul_i32 s%d, s%d, 768' % (S_C1, S_T0))
    E('s_mul_i32 s%d, s%d, 192' % (S_T2, S_WAVE))
    E('s_add_u32 s%d, s%d, s%d' % (S_T3, S_T2, S_C1))
    E('v_min_u32 v%d, 47, v%d' % (V_BAD, L))
    E('v_lshlrev_b32 v%d, 2, v%d' % (V_T + 4, V_BAD))
    E('buffer_load_dword v%d, v%d, %s, s%d offen' % (V_BLD, V_T + 4, srd(S_B1), S_T3))
    E('v_lshlrev_b32 v%d, 3, v%d' % (V_BAD, V_BAD))
    E('s_lshl_b32 s%d, s%d, 1' % (S_T2, S_T2))
    E('s_add_u32 s%d, s%d, %d' % (S_T2, S_T2, EXTRA))
    E('v_add_u32 v%d, s%d, v%d' % (V_BAD, S_T2, V_BAD))
    E('s_mul_i32 s%d, s%d, %d' % (S_T0, S_WAVE, 48 * 9216))
    E('s_add_u32 s%d, s%d, s%d' % (S_T0, S_T0, S_C1))
    E('s_mul_i32 s%d, s%d, %d' % (S_T2, S_WAVE, 16 * 3456))
    E('s_lshl_b32 s%d, s%d, 8' % (S_T3, S_G))
    E('s_add_u32 s%d, s%d, s%d' % (S_T2, S_T2, S_T3))
    E('s_add_u32 s%d, s%d, 1152' % (S_T2, S_T2))
    E('s_cmp_eq_u32 s%d, 3' % S_M)
    E('s_cselect_b32 s%d, s%d, s%d' % (S_ABASE, S_T2, S_T0))
    E('s_cselect_b32 s%d, s%d, s%d' % (S_WA, S_PTR + 2, S_PTR + 8))
    E('s_cselect_b32 s%d, s%d, s%d' % (S_WA + 1, S_PTR + 3, S_PTR + 9))
    E('s_mov_b32 s%d, %d' % (S_T0, 576 * 9216))
    E('s_cselect_b32 s%d, %d, s%d' % (S_WA + 2, 576 * 3456, S_T0))
    E('s_mov_b32 s%d, %d' % (S_T0, 192 * 9216 - 2 * 16 * 9216))
    E('s_cselect_b32 s%d, %d, s%d' % (S_SA, 64 * 3456 - 2 * 128, S_T0))
    E('s_mov_b32 s%d, %d' % (S_T0, 16 * 9216))
    E('s_cselect_b32 s%d, %d, s%d' % (S_SB, 128, S_T0))
    E('s_mov_b32 s%d, %d' % (S_T0, 9216))
    E('s_cselect_b32 s%d, %d, s%d' % (S_T0, 3456, S_T0))
    E('s_cselect_b32 s%d, s%d, 0' % (S_C3, S_G))
    E('s_and_b32 s%d, s%d, 0xffff' % (S_WA + 1, S_WA + 1))
    E('s_mov_b32 s%d, 0x20000' % (S_WA + 3))
    E('v_mul_u32_u24 v%d, s%d, v%d' % (V_DA, S_T0, t0))
    E('v_add_u32 v%d, v%d, v%d' % (V_DA, V_DA, t1))
    E('s_lshl_b32 s%d, s%d, 3' % (S_T0, S_T0))
    E('s_sub_u32 s%d, s%d, 1024' % (S_T0, S_T0))
    E('v_add_u32 v%d, s%d, v%d' % (V_DA + 1, S_T0, V_DA))
    E('v_add_u32 v%d, %d, v%d' % (V_DB + 1, 8 * 1152 - 1024, V_DB))
    E('v_lshlrev_b32 v%d, 4, v%d' % (V_L16, L))
    a, b, c = V_T + 4, V_T + 5, V_T + 6
    E('v_lshrrev_b32 v%d, 2, v%d' % (a, L))
    E('v_lshlrev_b32 v%d, 7, v%d' % (a, a))
    E('v_and_b32 v%d, 3, v%d' % (b, L))
    E('v_lshl_add_u32 v%d, v%d, 3, v%d' % (a, b, a))
    E('v_bfe_u32 v%d, v%d, 3, 2' % (b, L))
    for nb in range(4):
        E('s_add_u32 s%d, s%d, %d' % (S_T0, S_C3, nb))
        E('s_and_b32 s%d, s%d, 3' % (S_T2, S_T0))
        E('s_lshr_b32 s%d, s%d, 2' % (S_T0, S_T0))
        E('s_lshl_b32 s%d, s%d, 11' % (S_T0, S_T0))
        E('v_xor_b32 v%d, s%d, v%d' % (c, S_T2, b))
        E('v_lshl_add_u32 v%d, v%d, 5, v%d' % (c, c, a))
        E('v_add_u32 v%d, s%d, v%d' % (V_WR + nb, S_T0, c))
    for win in (1, 2):
        for nb in range(4):
            E('v_add_u32 v%d, 0x%x, v%d' % (V_WR + win * 4 + nb, win << 16, V_WR + nb))
    E('v_bfe_u32 v%d, v%d, 3, 1' % (a, L))
    E('v_mul_u32_u24 v%d, %d, v%d' % (a, XU, a))
    E('v_and_b32 v%d, 7, v%d' % (b, L))
    E('v_lshl_add_u32 v%d, v%d, 7, v%d' % (a, b, a))
    E('v_lshrrev_b32 v%d, 4, v%d' % (b, L))
    E('v_lshl_add_u32 v%d, v%d, 3, v%d' % (a, b, a))
    E('v_add_u32 v%d, s%d, v%d' % (a, S_LDSW, a))
    E('v_bfe_u32 v%d, v%d, 1, 2' % (b, L))
    for p in range(4):
        E('v_xor_b32 v%d, %d, v%d' % (c, p, b))
        E('v_lshl_add_u32 v%d, v%d, 5, v%d' % (XAD + p, c, a))
    E('s_lshl_b32 s%d, s%d, 2' % (S_T0, S_M))
    E('s_add_u32 s%d, s%d, s%d' % (S_T0, S_T0, S_G))
    E('s_min_u32 s%d, s%d, 11' % (S_T0, S_T0))
    E('s_mul_i32 s%d, s%d, 3' % (S_T0, S_T0))
    for i in range(3):
        E('s_add_u32 s%d, s%d, %d' % (S_T2, S_T0, i))
        E('s_and_b32 s%d, s%d, 3' % (S_T3, S_T2))
        E('s_lshr_b32 s%d, s%d, 2' % (S_T2, S_T2))
        E('s_mul_i32 s%d, s%d, %d' % (S_T2, S_T2, 2 * XU))
        E('v_xor_b32 v%d, s%d, v%d' % (c, S_T3, b))
        E('v_lshl_add_u32 v%d, v%d, 5, v%d' % (c, c, a))
        E('v_add_u32 v%d, s%d, v%d' % (XRA + i, S_T2, c))
    for i in range(4):
        E('v_mov_b32 v%d, 0x3f803f80' % (ONES + i))
    E('v_mov_b32 v%d, 1.0' % ONEF)
    for r in range(4):
        m = sum(1 << (20 * g + r) for g in range(4))
        E('s_mov_b32 s%d, 0x%x' % (S_DM + 2 * r, m & 0xffffffff))
        E('s_mov_b32 s%d, 0x%x' % (S_DM + 2 * r + 1, m >> 32))
    for i in (0, 1, 4, 5):
        E('v_mov_b32 v%d, 0' % (SEL + i))
    E('v_mov_b32 v%d, 0x3f80' % a)
    for h in range(2):
        E('v_cndmask_b32 v%d, 0, v%d, s[%d:%d]' % (SEL + 2 + h, a, S_DM + 4 * h, S_DM + 4 * h + 1))
        E('v_cndmask_b32 v%d, v%d, v%d, s[%d:%d]' % (SEL + 2 + h, SEL + 2 + h, ONEF, S_DM + 4 * h + 2, S_DM + 4 * h + 3))

def layernorm():
    def S_(sb):
        return ACC + sb * 20
    def rd(sb, part):
        ops = [lambda: E.wait_tag(('x', sb))]
        for ks in range(6 * part, 6 * part + 6):
            for j in range(2):
                p = 2 * (ks & 1) + j
                ops.append('ds_read_b64 %s, v%d offset:%d' % (V(xn(ks, sb) + 2 * j, 2), XAD + p, (18 * sb + 2 * (ks >> 1)) * XU))
        return ops
    def st(sb, part):
        S = S_(sb)
        ops = []
        for ks in range(6 * part, 6 * part + 6):
            x = V(xn(ks, sb), 4)
            ops.append(MF % (V(S + 4, 4), x, x, V(S + 4, 4) if ks else '0'))
            ops.append(MF % (V(S, 4), V(ONES, 4), x, V(S, 4) if ks else '0'))
        return ops
    def stats(sb):
        xr = ['ds_read_b64 %s, v%d offset:%d' % (A(XRES + (i * 2 + sb) * 2, 2), XRA + i, 18 * XU * sb) for i in range(3)]
        return rd(sb, 0) + xr + merge(rd(sb, 1), st(sb, 0)) + merge(rd(sb, 2), st(sb, 1)) + st(sb, 2)
    def fin(sb):
        S = S_(sb)
        mean, var, t = S + 14, S + 15, S + 16
        o = []
        for r in range(4):
            o.append('v_cndmask_b32 v%d, %s, v%d, s[%d:%d]' % (t, 'v%d' % t if r else '0', S + 4 + r, S_DM + 2 * r, S_DM + 2 * r + 1))
        o.append('v_mfma_f32_16x16x4_f32 %s, v%d, v%d, 0' % (V(S + 8, 4), ONEF, t))
        o.append('v_mul_f32 v%d, 0x%x, v%d' % (mean, 0x3ae38e39, S))
        o.append('v_cvt_pk_bf16_f32 v%d, v%d, v%d' % (t, mean, mean))
        o.append('v_lshlrev_b32 v%d, 16, v%d' % (t, t))
        for r in range(4):
            o.append('v_xor_b32 v%d, 0x80000000, v%d' % (S + r, t))
        o.append('v_mul_f32 v%d, 0x%x, v%d' % (var, 0x3ae38e39, S + 8))
        o.append('v_fma_f32 v%d, -v%d, v%d, v%d' % (var, mean, mean, var))
        o.append('v_max_f32 v%d, 0, v%d' % (var, var))
        def rr():
            return ['v_cvt_pk_bf16_f32 v%d, v%d, v%d' % (var, var, var), 'v_lshlrev_b32 v%d, 16, v%d' % (var, var)]
        o += rr()
        o.append('v_add_f32 v%d, 0x3727c5ac, v%d' % (var, var))
        o += rr()
        o.append('v_sqrt_f32 v%d, v%d' % (var, var))
        o += rr()
        o.append('v_rcp_f32 v%d, v%d' % (S + 12, var))
        return o
    def norm(sb):
        S = S_(sb)
        NQ = 5
        ops = []
        def mm(n):
            ks, j = divmod(n, 2)
            return MF % (V(LNT + (n % NQ) * 4, 4), V(SEL + 2 - 2 * j, 4), V(xn(ks, sb), 4), V(S, 4))
        def vv(n):
            ks, j = divmod(n, 2)
            q = LNT + (n % NQ) * 4
            return ['v_mul_f32 v%d, v%d, v%d' % (q + i, q + i, S + 12) for i in range(4)] + [
                    'v_cvt_pk_bf16_f32 v%d, v%d, v%d' % (xn(ks, sb) + 2 * j, q, q + 1),
                    'v_cvt_pk_bf16_f32 v%d, v%d, v%d' % (xn(ks, sb) + 2 * j + 1, q + 2, q + 3)]
        LAG = 3
        for n in range(36 + LAG):
            if n < 36:
                ops.append(mm(n))
            if n >= LAG:
                ops += vv(n - LAG)
        return ops
    wd = ['s_mov_b32 s%d, s%d' % (S_SO, S_ABASE)]
    for t in range(3):
        for p in range(3):
            wd.append('s_add_u32 m0, s%d, %d' % (S_LDSW, t * SLOT + p * 2048))
            if t or p:
                wd.append('s_add_u32 s%d, s%d, s%d' % (S_SO, S_SO, S_SB if p else S_SA))
            wd.append(Ins('buffer_load_dwordx4 v%d, %s, s%d offen lds' % (V_DA, srd(S_WA), S_SO), tag=('dma', t)))
            wd.append(Ins('buffer_load_dwordx4 v%d, %s, s%d offen offset:1024 lds' % (V_DA + 1, srd(S_WA), S_SO), tag=('dma', t)))
    for op in stats(0):
        do(op)
    if OPT['stamps'] in (3, 4): stamp('stats0')
    s1 = stats(1)
    for op in merge(fin(0), s1[:16], wd[:9]):
        do(op)
    wcut = len(wd) if not OPT['wsplit'] else 13
    for op in merge(norm(0), s1[16:] + fin(1), wd[9:wcut]):
        do(op)
    if OPT['stamps'] in (3, 4): stamp('norm0')
    E('v_readfirstlane_b32 s%d, v%d' % (S_E, V_FL2))
    b0 = V_T + 4
    E('v_lshlrev_b32 v%d, 16, v%d' % (b0, V_BLD))
    E('v_and_b32 v%d, 0xffff0000, v%d' % (b0 + 1, V_BLD))
    E('ds_write_b64 v%d, %s' % (V_BAD, V(b0, 2)))
    if OPT['prefetch'] and not OPT['pfearly']:
        early_prefetch()
    for op in (merge(norm(1), wd[wcut:]) if wd[wcut:] else norm(1)):
        do(op)
    stamp('ln done')

def mlp():
    D = OPT['D']
    su = []
    def mk_srd_l(dst, ptr, nbytes):
        return ['s_mov_b32 s%d, s%d' % (dst, ptr), 's_and_b32 s%d, s%d, 0xffff' % (dst + 1, ptr + 1),
                's_mov_b32 s%d, 0x%x' % (dst + 2, nbytes), 's_mov_b32 s%d, 0x20000' % (dst + 3)]
    su += mk_srd_l(S_WB, S_PTR + 12, 4608 * 1152)
    su += mk_srd_l(S_B2, S_PTR + 14, 576 * 2)
    su += mk_srd_l(S_OUT, S_PTR + 16, 2048 * 1152)
    su += mk_srd_l(S_WO, S_PTR + 4, 576 * 1152)
    su += [
        's_mul_i32 s%d, s%d, %d' % (S_C2, S_G, 1152 * 1152),
        's_mul_i32 s%d, s%d, 384' % (S_T1, S_M),
        's_add_u32 s%d, s%d, s%d' % (S_C2, S_C2, S_T1),
        's_mul_i32 s%d, s%d, %d' % (S_BBASE, S_WAVE, 16 * 1152),
        's_add_u32 s%d, s%d, s%d' % (S_BBASE, S_BBASE, S_C2),
        's_lshl_b32 s%d, s%d, 2' % (S_T0, S_RT),
        's_add_u32 s%d, s%d, s%d' % (S_T0, S_T0, S_G),
        's_mul_i32 s%d, s%d, %d' % (S_T1, S_T0, 3 * 4 * 6 * 4096),
        's_mul_i32 s%d, s%d, %d' % (S_T2, S_WAVE, 6 * 4096),
        's_add_u32 s%d, s%d, s%d' % (S_T1, S_T1, S_T2)]
    su += ['s_add_u32 s%d, s%d, 0x%x' % (S_H0 + mm, S_T1, WS_H + mm * 4 * 6 * 4096) for mm in range(3)]
    su += ['s_mul_i32 s%d, s%d, %d' % (S_T2, S_M, 4 * 6 * 4096),
           's_add_u32 s%d, s%d, s%d' % (S_HOWN, S_H0, S_T2),
           's_lshl_b32 s%d, s%d, 2' % (S_T0, S_T0),
           's_add_u32 s%d, s%d, s%d' % (S_T0, S_T0, S_WAVE),
           's_lshl_b32 s%d, s%d, 9' % (S_T0, S_T0),
           'v_min_u32 v%d, 2, v%d' % (V_FLG, V_LANE),
           'v_lshlrev_b32 v%d, 7, v%d' % (V_FLG, V_FLG),
           'v_add_u32 v%d, s%d, v%d' % (V_FLG, S_T0, V_FLG),
           's_lshl_b32 s%d, s%d, 7' % (S_T1, S_M),
           's_add_u32 s%d, s%d, s%d' % (S_FL, S_T0, S_T1),
           's_lshl_b32 s%d, s%d, 2' % (S_T1, S_M),
           's_add_u32 s%d, s%d, s%d' % (S_T1, S_T1, S_G),
           's_mul_i32 s%d, s%d, 96' % (S_C1, S_T1),
           's_mul_i32 s%d, s%d, %d' % (S_OBASE, S_WAVE, 128 * 1152),
           's_add_u32 s%d, s%d, s%d' % (S_OBASE, S_OBASE, S_C1)]
    E('v_lshrrev_b32 v%d, 4, v%d' % (V_BIAS, V_LANE))
    E('v_lshlrev_b32 v%d, 4, v%d' % (V_BIAS, V_BIAS))
    E('v_add_u32 v%d, %d, v%d' % (V_BIAS, EXTRA, V_BIAS))

    def stage_dma(t):
        if t < 18:
            ch, st = divmod(t, 3)
            return dma_ops(t, t % 6, S_WA, V_DA, S_ABASE, [(192 * st + 16 * p) * 9216 + 128 * ch for p in range(3)])
        if t < 36:
            ch, mm = divmod(t - 18, 3)
            return dma_ops(t, t % 6, S_WB, V_DB, S_BBASE, [(384 * mm + 64 * ch) * 1152 + 128 * p for p in range(3)])
        return []

    def acc1(ch, nb, sb):
        return ACC + (ch & 1) * 32 + (nb * 2 + sb) * 4
    def bias_reads(ch, nbs=range(4)):
        return ['ds_read_b128 %s, v%d offset:%d' % (V(acc1(ch, nb, sb), 4), V_BIAS, (ch * 64 + nb * 16) * 4)
                for nb in nbs for sb in range(2)]
    def epi(ch):
        ops = ['s_add_u32 s%d, s%d, %d' % (S_SO2, S_HOWN, ch * 4096)]
        for kl in range(2):
            for sb in range(2):
                T = HT + (kl * 2 + sb) * 4
                for h in range(2):
                    a = acc1(ch, 2 * kl + h, sb)
                    for i in range(4):
                        ops.append('v_mul_f32 v%d, v%d, |v%d|' % (a + i, a + i, a + i))
                    ops.append('v_cvt_pk_bf16_f32 v%d, v%d, v%d' % (T + 2 * h, a, a + 1))
                    ops.append('v_cvt_pk_bf16_f32 v%d, v%d, v%d' % (T + 2 * h + 1, a + 2, a + 3))
                for i in range(4):
                    ops.append('v_pk_max_i16 v%d, v%d, 0' % (T + i, T + i))
                ops.append(Ins('buffer_store_dwordx4 %s, v%d, %s, s%d offen offset:%d sc1' % (V(T, 4), V_L16, srd(S_WS), S_SO2, (kl * 2 + sb) * 1024), tag=('h', ch)))
            if ch + 2 < 6:
                ops += bias_reads(ch + 2, (2 * kl, 2 * kl + 1))
        return ops
    def hstage(u):
        return WRING + (u % 6) * 16
    def hloads(u):
        ch, mm = divmod(u, 3)
        ops = ['s_add_u32 s%d, s%d, %d' % (S_T2, S_H0 + mm, ch * 4096)]
        for f in range(4):
            ops.append('buffer_load_dwordx4 %s, v%d, %s, s%d offen offset:%d%s' % (A(hstage(u) + 4 * f, 4), V_L16, srd(S_WS), S_T2, f * 1024, '' if OPT['plainld'] else ' sc1'))
        return ops
    def acc2(nb, sb):
        return XN + (nb * 2 + sb) * 4

    groups = []
    for t in range(18):
        ch, st = divmod(t, 3)
        for nb in range(4):
            for kp in range(3):
                fr = []
                for f in range(2):
                    ksl = 2 * kp + f
                    fr.append([lds_rd((2 * ksl + j) // 3, t % 6, (2 * ksl + j) % 3, nb) for j in range(2)])
                def mf(w0, w1, ch=ch, nb=nb, ks=6 * st + 2 * kp):
                    o = []
                    for sb in range(2):
                        a = V(acc1(ch, nb, sb), 4)
                        o.append(MF % (a, w0, V(xn(ks, sb), 4), a))
                        o.append(MF % (a, w1, V(xn(ks + 1, sb), 4), a))
                    return o
                groups.append(Group(t, fr, mf))
    def g2(u, nbl, stage, tags=None):
        fr = [[lds_rd(2 * kl + j, (18 + u) % 6, nbl >> 2, nbl & 3) for j in range(2)] for kl in range(2)]
        def mf(w0, w1):
            o = []
            for sb in range(2):
                a = V(acc2(nbl, sb), 4)
                o.append(MF % (a, w0, A(hstage(u) + sb * 4, 4), a if u else '0'))
                o.append(MF % (a, w1, A(hstage(u) + 8 + sb * 4, 4), a))
            return o
        return Group(stage, fr, mf, tags)
    for u in range(14):
        for nbl in range(12):
            groups.append(g2(u, nbl, 18 + u))

    extra = {t: [] for t in range(36)}
    extra[0] += su
    extra[1] += bias_reads(1)
    if OPT['prefetch']:
        pfw = [o.replace('s%d' % S_SO2, 's%d' % S_T2) for o in l2_prefetch(S_WB, S_C2, V_DB, 1152, 1152, [0, 128, 256], 144, S_T0)]
        pfo = ['s_and_b32 s%d, s%d, 0xffffff80' % (S_T1, S_C1)] + [o.replace('s%d' % S_SO2, 's%d' % S_T2) for o in l2_prefetch(S_WO, S_T1, V_DB, 1152, 576, [0, 128], 176, S_T0)]
        if OPT['pf2'] == 1:
            extra[1] += pfw[:27]
            extra[2] += pfw[27:] + pfo
        else:
            for i in range(7):
                extra[OPT['pf2'] + i] += pfw[9 * i:9 * i + 9]
            extra[21] += [o.replace('s%d' % S_T2, 's%d' % S_SO2) for o in pfo[:10]]
            extra[22] += [o.replace('s%d' % S_T2, 's%d' % S_SO2) for o in pfo[10:19]]
            extra[23] += [o.replace('s%d' % S_T2, 's%d' % S_SO2) for o in pfo[19:]]
    for ch in range(6):
        e = epi(ch) if not OPT['noepi'] else []
        n = len(e)
        c1, c2 = n // 3, (n * 2) // 3
        extra[3 * ch + 3] += e[:c1]
        extra[3 * ch + 4] += e[c1:c2]
        extra[3 * ch + 5] += e[c2:]
    def publish(ch, k):
        def f():
            E.wait_tag(('h', ch))
            set_flag(S_FL, k, V_T)
        return f
    for k, ch in enumerate((1, 3, 5), 1):
        tp = 3 * ch + 7
        extra[tp].append(publish(ch, k))
        extra[tp + 2].append(lambda: poll_issue(V_FL2, V_FLG))
        extra[tp + 4].insert(0, lambda k=k: poll_check(V_FL2, V_FLG, k, issued=True))
        for i, u in enumerate(range(6 * (k - 1), 6 * k)):
            extra[tp + 4 + (i if k < 3 else (0, 1, 2, 3, 3, 4)[i])] += hloads(u) if not OPT['noh'] else []
    BR = 128
    OV = 134
    PR = 182
    xo, g8, V_FP = V_T + 1, V_T + 2, V_T + 3
    tp = [
        's_mul_i32 s%d, s%d, 36' % (S_T0, S_ROW0),
        's_mul_i32 s%d, s%d, 12' % (S_T1, S_M),
        's_add_u32 s%d, s%d, s%d' % (S_T0, S_T0, S_T1),
        's_lshl_b32 s%d, s%d, 13' % (S_PB, S_T0),
        's_add_u32 s%d, s%d, 0x%x' % (S_PB, S_PB, WS_P),
        's_mul_i32 s%d, s%d, 3' % (S_T0, S_ROW0),
        's_add_u32 s%d, s%d, s%d' % (S_T0, S_T0, S_M),
        's_lshl_b32 s%d, s%d, 9' % (S_T0, S_T0),
        's_add_u32 s%d, s%d, %d' % (S_T0, S_T0, FL_P * 128),
        's_lshl_b32 s%d, s%d, 7' % (S_T1, S_G),
        's_add_u32 s%d, s%d, s%d' % (S_FL2, S_T0, S_T1),
        'v_min_u32 v%d, 3, v%d' % (V_FLG, V_LANE),
        'v_lshlrev_b32 v%d, 7, v%d' % (V_FLG, V_FLG),
        'v_add_u32 v%d, s%d, v%d' % (V_FP, S_T0, V_FLG),
        's_lshl_b32 s%d, s%d, 9' % (S_T0, S_ROW0),
        's_add_u32 s%d, s%d, %d' % (S_T0, S_T0, FL_O * 128),
        'v_add_u32 v%d, s%d, v%d' % (V_FLG, S_T0, V_FLG),
        'v_and_b32 v%d, 15, v%d' % (xo, V_LANE),
        'v_mul_u32_u24 v%d, 1152, v%d' % (xo, xo),
        'v_lshrrev_b32 v%d, 4, v%d' % (g8, V_LANE),
        'v_lshlrev_b32 v%d, 3, v%d' % (g8, g8),
        'v_add_u32 v%d, v%d, v%d' % (xo, xo, g8),
        's_mul_i32 s%d, s%d, %d' % (S_C2, S_ROW0, 32 * 1152),
        's_add_u32 s%d, s%d, s%d' % (S_C2, S_C2, S_C1),
        's_add_u32 s%d, s%d, %d' % (S_OB, S_C2, 16 * 1152),
        's_mul_i32 s%d, s%d, %d' % (S_HOWN, S_ROW0, 36 * 1024),
        's_add_u32 s%d, s%d, 0x%x' % (S_HOWN, S_HOWN, WS_O)]
    extra[27] += tp[:14]
    extra[28] += tp[14:]
    for i in range(3):
        extra[30].append('buffer_load_dwordx2 %s, v%d, %s, s%d offen offset:%d' % (V(BR + i * 2, 2), g8, srd(S_B2), S_C1, 32 * i))
    def ofrag(ks, sb):
        if ks < 12:
            return A(144 + (ks * 2 + sb) * 4, 4)
        return V(OV + ((ks - 12) * 2 + sb) * 4, 4)
    ol = []
    for ks in range(18):
        if ks % 2 == 0:
            ol.append('s_add_u32 s%d, s%d, %d' % (S_T2, S_HOWN, ks * 2048))
        for sb in range(2):
            ol.append('buffer_load_dwordx4 %s, v%d, %s, s%d offen offset:%d sc1' % (ofrag(ks, sb), V_L16, srd(S_WS), S_T2, ((ks & 1) * 2 + sb) * 1024))
    WV = (V_DA, V_DA + 1, V_BIAS)
    WR = XRA
    wp = []
    for j in range(3):
        wp += ['v_add_u32 v%d, %d, v%d' % (V_T + 4, 64 * j, V_LANE),
               'v_mul_u32_u24 v%d, 10923, v%d' % (V_T + 5, V_T + 4),
               'v_lshrrev_b32 v%d, 16, v%d' % (V_T + 5, V_T + 5),
               'v_mul_u32_u24 v%d, %d, v%d' % (V_T + 5, 1152 - 96, V_T + 5),
               'v_add_u32 v%d, v%d, v%d' % (WV[j], V_T + 5, V_L16)]
    wp += ['v_lshrrev_b32 v%d, 2, v%d' % (V_T + 4, V_LANE),
           'v_mul_u32_u24 v%d, 96, v%d' % (V_T + 4, V_T + 4),
           'v_and_b32 v%d, 3, v%d' % (V_T + 5, V_LANE),
           'v_lshl_add_u32 v%d, v%d, 3, v%d' % (WR, V_T + 5, V_T + 4),
           'v_add_u32 v%d, 0x10000, v%d' % (WR + 1, WR),
           'v_add_u32 v%d, 0x20000, v%d' % (WR + 2, WR),
           's_and_b32 s%d, s%d, 1' % (S_T0, S_WAVE),
           's_mul_i32 s%d, s%d, 3072' % (S_SA, S_T0),
           's_add_u32 s%d, s%d, %d' % (S_SA, S_SA, EXTRA),
           's_mul_i32 s%d, s%d, %d' % (S_SB, S_T0, 32 * 1152),
           's_add_u32 s%d, s%d, s%d' % (S_SB, S_SB, S_C1),
           's_add_u32 s%d, s%d, %d' % (S_SB, S_SB, 512 * 1152)]
    extra[24] += wp[:14]
    extra[25] += wp[14:]
    def wo_tile(n):
        if n < 4:
            o = ['s_add_u32 m0, s%d, %d' % (S_LDSW, n * 3072), 's_add_u32 s%d, s%d, %d' % (S_SO, S_OBASE, n * 32 * 1152)]
        else:
            o = ['s_mov_b32 m0, s%d' % S_SA, 's_mov_b32 s%d, s%d' % (S_SO, S_SB)]
        for j in range(3):
            o.append(Ins('buffer_load_dwordx4 v%d, %s, s%d offen offset:%d lds' % (WV[j], srd(S_WO), S_SO, 1024 * j), tag='wo'))
        return o
    def wo_rd(ks, j, i):
        off = ((ks >> 2) * REG + (ks & 3) * 3072 if ks < 16 else EXTRA + (ks - 16) * 3072) + j * 16 * 96 + 32 * i
        return WR + (off >> 16), off & 0xffff

    side = {}
    for t in range(32):
        d = stage_dma(t + D)
        if t == 0 and D == 4:
            d = stage_dma(3) + d
        if t == 29:
            d = d + wo_tile(4)
        if t == 31:
            side[t] = d + extra[t] + [lambda: None] * 12
        else:
            side[t] = merge(d, extra[t]) if d and extra[t] else (d or extra[t])
    inter = {}
    if OPT['stamps'] == 4:
        for t in (2, 4, 6, 8):
            inter[t * 12] = lambda t=t: stamp('st%d' % t)
    if OPT['stamps'] in (1, 4, 5):
        inter[18 * 12] = lambda: stamp('gemm1 done')
    if OPT['stamps'] == 2:
        for t in list(range(2, 32, 2)):
            inter[t * 12] = lambda t=t: stamp('st%d' % t)
    ncommon = len(groups)
    cut = ncommon - LEAD // 4 - 2
    OAT = OPT['oat']

    def variant(g):
        vg = list(groups)
        trip = [(g + 1 + k) % 4 for k in range(4)]
        for k, q in enumerate(trip):
            for u in range(14, 18):
                for i in range(3):
                    if k == 0:
                        st, tags = (32, [('dma', 32), ('dma', 33)]) if u < 16 else (32.5, [('dma', 34), ('dma', 35)])
                    else:
                        st, tags = 32 + k, 'nobar'
                    vg.append(g2(u, 3 * q + i, st, tags))
        for th in range(3):
            for i in range(3):
                for kp in range(3):
                    ks = 6 * th + 2 * kp
                    fr = [[wo_rd(ks + f, j, i) for j in range(2)] for f in range(2)]
                    def mf(w0, w1, i=i, ks=ks):
                        o = []
                        for sb in range(2):
                            a = V(acc2(3 * g + i, sb), 4)
                            o.append(MF % (a, w0, ofrag(ks, sb), a))
                            o.append(MF % (a, w1, ofrag(ks + 1, sb), a))
                        return o
                    vg.append(Group(100 + th, fr, mf, ['wo'] if th == 0 else 'nobar'))
        def pstore(q):
            o = []
            for nbl in range(3 * q, 3 * q + 3):
                o.append('s_add_u32 s%d, s%d, %d' % (S_SO2, S_PB, nbl * 8192 + g * 2048))
                a0, a1 = acc2(nbl, 0), acc2(nbl, 1)
                if OPT['pbf16']:
                    o += ['v_cvt_pk_bf16_f32 v%d, v%d, v%d' % (a0, a0, a0 + 1),
                          'v_cvt_pk_bf16_f32 v%d, v%d, v%d' % (a0 + 1, a0 + 2, a0 + 3),
                          'v_cvt_pk_bf16_f32 v%d, v%d, v%d' % (a0 + 2, a1, a1 + 1),
                          'v_cvt_pk_bf16_f32 v%d, v%d, v%d' % (a0 + 3, a1 + 2, a1 + 3),
                          Ins('buffer_store_dwordx4 %s, v%d, %s, s%d offen sc1' % (V(a0, 4), V_L16, srd(S_WS), S_SO2), tag='pst')]
                else:
                    o += [Ins('buffer_store_dwordx4 %s, v%d, %s, s%d offen sc1' % (V(a0, 4), V_L16, srd(S_WS), S_SO2), tag='pst'),
                          Ins('buffer_store_dwordx4 %s, v%d, %s, s%d offen offset:1024 sc1' % (V(a1, 4), V_L16, srd(S_WS), S_SO2), tag='pst')]
            return [lambda: None] * 3 + o
        vs = dict(side)
        ex = {32: wo_tile(0) + wo_tile(1), 32.5: wo_tile(2) + wo_tile(3), 33: [], 34: [], 35: [], 100: [], 101: [], 102: []}
        order = [32, 32.5, 33, 34, 35, 100, 101, 102]
        oi = order.index(OAT)
        ex[order[oi - 2]].insert(0, lambda: poll_issue(V_FL2, V_FLG))
        ex[OAT].insert(0, lambda: poll_check(V_FL2, V_FLG, 1, issued=True))
        per = OPT['oper']
        for n, st in enumerate(order[oi:]):
            ex[st] += ol[5 * per * n:5 * per * (n + 1)]
        for k in range(3):
            ex[33 + k] = merge(ex[33 + k], pstore(trip[k])) if ex[33 + k] else pstore(trip[k])
        def pub():
            E.wait_tag('pst')
            set_flag(S_FL2, 1, V_T)
        ex[101].insert(0, pub)
        ex[102].append(lambda: poll_issue(V_FL2, V_FP))
        vs.update(ex)
        return vg, vs

    run_groups(variant(0)[0], side, inter, first=bias_reads(0), hi=cut)
    lbl = [newlabel('tail') for _ in range(4)]
    for g in range(1, 4):
        E('s_cmp_eq_u32 s%d, %d' % (S_G, g))
        E('s_cbranch_scc1 %s' % lbl[g])
    snap = E.snapshot()
    snap = ([(p, pp + 4) for p, pp in snap[0]],) + snap[1:]
    sn = stamp_n[0]
    for g in range(4):
        E.restore(snap)
        stamp_n[0] = sn
        E.label(lbl[g])
        vg, vs = variant(g)
        vi = {}
        if OPT['stamps']:
            vi[ncommon] = lambda: stamp('phase A done')
            vi[ncommon + 48] = lambda: stamp('gemm2 done')
        if OPT['stamps'] == 5:
            for k in (1, 2, 3):
                vi[ncommon + 12 * k] = lambda k=k: stamp('trip%d' % k)
            vi[ncommon + 57] = lambda: stamp('p1')
            vi[ncommon + 66] = lambda: stamp('p2')
        run_groups(vg, vs, vi, lo=cut)
        stamp('proj done')
        poll_check(V_FL2, V_FP, 1, issued=True)
        stamp('partials ready')
        srcs = [s for s in range(4) if s != g]
        nsb = 1 if OPT['pbf16'] else 2
        for i in range(3):
            E('s_add_u32 s%d, s%d, %d' % (S_SO, S_PB, (3 * g + i) * 8192))
            E('s_add_u32 s%d, s%d, %d' % (S_SO2, S_PB, (3 * g + i) * 8192 + 4096))
            for sb in range(nsb):
                for q, s in enumerate(srcs):
                    E('buffer_load_dwordx4 %s, v%d, %s, s%d offen offset:%d sc1' % (V(PR + ((i * nsb + sb) * 3 + q) * 4, 4), V_L16, srd(S_WS), S_SO2 if s >= 2 else S_SO, (s & 1) * 2048 + sb * 1024))
        for i in range(3):
            for sb in range(2):
                a = acc2(3 * g + i, sb)
                for h in range(2):
                    E('v_accvgpr_read_b32 v%d, a%d' % (V_T + 6, XRES + (i * 2 + sb) * 2 + h))
                    for src in (V_T + 6, BR + i * 2 + h):
                        E('v_lshlrev_b32 v%d, 16, v%d' % (V_T + 4, src))
                        E('v_and_b32 v%d, 0xffff0000, v%d' % (V_T + 5, src))
                        E('v_add_f32 v%d, v%d, v%d' % (a + 2 * h, a + 2 * h, V_T + 4))
                        E('v_add_f32 v%d, v%d, v%d' % (a + 2 * h + 1, a + 2 * h + 1, V_T + 5))
        for i in range(3):
            for sb in range(2):
                a = acc2(3 * g + i, sb)
                for q in range(3):
                    if OPT['pbf16']:
                        p = PR + (i * 3 + q) * 4 + sb * 2
                        for h in range(2):
                            E('v_lshlrev_b32 v%d, 16, v%d' % (V_T + 4, p + h))
                            E('v_and_b32 v%d, 0xffff0000, v%d' % (V_T + 5, p + h))
                            E('v_add_f32 v%d, v%d, v%d' % (a + 2 * h, a + 2 * h, V_T + 4))
                            E('v_add_f32 v%d, v%d, v%d' % (a + 2 * h + 1, a + 2 * h + 1, V_T + 5))
                    else:
                        p = PR + ((i * 2 + sb) * 3 + q) * 4
                        for r in range(4):
                            E('v_add_f32 v%d, v%d, v%d' % (a + r, a + r, p + r))
                E('v_cvt_pk_bf16_f32 v%d, v%d, v%d' % (a, a, a + 1))
                E('v_cvt_pk_bf16_f32 v%d, v%d, v%d' % (a + 1, a + 2, a + 3))
                E('buffer_store_dwordx2 %s, v%d, %s, s%d offen offset:%d' % (V(a, 2), xo, srd(S_OUT), S_OB if sb else S_C2, 32 * i))
        if g == 0:
            skip = newlabel('noep')
            E('s_or_b32 s%d, s%d, s%d' % (S_T0, S_M, S_WAVE))
            E('s_cmp_lg_u32 s%d, 0' % S_T0)
            E('s_cbranch_scc1 %s' % skip)
            E('s_lshl_b32 s%d, s%d, 7' % (S_T0, S_RT))
            E('s_add_u32 s%d, s%d, 0x%x' % (S_T0, S_T0, WS_E))
            set_flag(S_T0, 16, V_T)
            E.label(skip)
        stamp('end')
        E('s_endpgm')

from attn import attention

def main():
    hdr = open('cdna_kernels/%s.s.ref' % NAME).read().split('\n')
    head = [l for l in hdr if l.startswith(';') and '@launch' not in l and 'Override' not in l and 'grid=ceil' not in l]
    out = head + ['; @launch grid=(256,1,1) block=(256,1,1) lds=%d' % LDS_BYTES,
                  '.amdgcn_target "amdgcn-amd-amdhsa--gfx950"', '.text', '.globl %s_kernel' % NAME, '.p2align 8',
                  '.type %s_kernel,@function' % NAME, '%s_kernel:' % NAME]
    prologue()
    E('s_cmp_eq_u32 s%d, 3' % S_M)
    E('s_cbranch_scc1 L_attn')
    snap = E.snapshot()
    sn = stamp_n[0]
    mlp()
    E.raw('\n'.join(cold)); cold.clear()
    E.restore(snap)
    stamp_n[0] = sn
    E.label('L_attn')
    attention(sys.modules[__name__])
    E.raw('\n'.join(cold)); cold.clear()
    E.label('L_exit')
    E.raw('    s_endpgm')
    out.append(E.text())
    out += ['.section .rodata,"a"', '.p2align 6', '.amdhsa_kernel %s_kernel' % NAME,
            '  .amdhsa_next_free_vgpr 512', '  .amdhsa_next_free_sgpr 102', '  .amdhsa_accum_offset 256',
            '  .amdhsa_group_segment_fixed_size 0', '  .amdhsa_kernarg_size 88', '  .amdhsa_user_sgpr_count 2',
            '  .amdhsa_user_sgpr_kernarg_segment_ptr 1', '  .amdhsa_system_sgpr_workgroup_id_x 1',
            '  .amdhsa_float_denorm_mode_32 3',
            '.end_amdhsa_kernel', '']
    open(sys.argv[1], 'w').write('\n'.join(out))
    print('instructions %d nops %d waits %d' % (E.count, E.nnop, E.nwait))

if __name__ == '__main__':
    main()
```
